```python
import torch

def _softmax(x, axis=-1):
    return torch.softmax(x, dim=axis)
def _gelu(x):
    return torch.nn.functional.gelu(x, approximate="tanh")
def _silu(x):
    return torch.nn.functional.silu(x)
def _sigmoid(x):
    return torch.sigmoid(x)
def _layernorm(x, axis=-1, eps=1e-5):
    m = x.mean(dim=axis, keepdim=True)
    v = x.var(dim=axis, keepdim=True, unbiased=False)
    return (x - m) / torch.sqrt(v + eps)
def _scatter_add(tgt, idx, src, axis=0):
    return tgt.clone().index_add_(axis, idx, src)
def _segment_sum(src, seg, n):
    out = torch.zeros((n,) + src.shape[1:], dtype=src.dtype)
    return out.index_add_(0, seg, src)
def _pad(x, pw):
    flat = tuple(v for pair in reversed(pw) for v in pair)
    return torch.nn.functional.pad(x, flat)

kernel_name = 'sequential_preLN__ssm_conv_s4__glu_gated_bilinear__prompt'

def setup_inputs():

    _w = (lambda a: (lambda t: t.to(torch.bfloat16) if t.is_floating_point() else t)(torch.as_tensor(a)))
    def _A_setup():
        B, L, D, N = 1, 2048, 448, 256
        A_re = -(lambda _x: torch.exp(torch.as_tensor(_x)))((lambda *s: torch.randn(*s, dtype=torch.bfloat16) * 3.2)(D, N))
        A_im = torch.pi * (lambda *s: torch.randn(*s, dtype=torch.bfloat16) * 0.05)(D, N)
        B_re = (lambda *s: torch.randn(*s, dtype=torch.bfloat16) * 0.05)(D, N)
        B_im = (lambda *s: torch.randn(*s, dtype=torch.bfloat16) * 0.05)(D, N)
        C_re = (lambda *s: torch.randn(*s, dtype=torch.bfloat16) * 0.05)(D, N)
        C_im = (lambda *s: torch.randn(*s, dtype=torch.bfloat16) * 0.05)(D, N)
        log_dt = (lambda *s: torch.randn(*s, dtype=torch.bfloat16) * 0.05)(D) * 0.5 - 4.0
        Dskip = (lambda *s: torch.randn(*s, dtype=torch.bfloat16) * 0.05)(D)
        return {
            "u": _w((lambda *s: torch.randn(*s, dtype=torch.bfloat16) * 0.05)(B, L, D)),
            "A_re": _w(A_re),
            "A_im": _w(A_im),
            "B_re": _w(B_re),
            "B_im": _w(B_im),
            "C_re": _w(C_re),
            "C_im": _w(C_im),
            "log_dt": _w(log_dt),
            "Dskip": _w(Dskip),
        }
    _A_in = _A_setup()

    def _B_setup():
        B, S, D, F = 1, 2048, 448, 1792
        return {
            "x": _w((lambda *s: torch.randn(*s, dtype=torch.bfloat16) * 0.05)(B, S, D)),
            "w_gate": _w((lambda *s: torch.randn(*s, dtype=torch.bfloat16) * 0.4)(D, F) * (D ** -0.5)),
            "w_up": _w((lambda *s: torch.randn(*s, dtype=torch.bfloat16) * 0.4)(D, F) * (D ** -0.5)),
            "w_down": _w((lambda *s: torch.randn(*s, dtype=torch.bfloat16) * 0.4)(F, D) * (F ** -0.5)),
        }
    _B_in = _B_setup()

    return {
        "A_u": _A_in["u"],
        "A_A_re": _A_in["A_re"],
        "A_A_im": _A_in["A_im"],
        "A_B_re": _A_in["B_re"],
        "A_B_im": _A_in["B_im"],
        "A_C_re": _A_in["C_re"],
        "A_C_im": _A_in["C_im"],
        "A_log_dt": _A_in["log_dt"],
        "A_Dskip": _A_in["Dskip"],
        "B_x": _B_in["x"],
        "B_w_gate": _B_in["w_gate"],
        "B_w_up": _B_in["w_up"],
        "B_w_down": _B_in["w_down"],
    }

def reference(A_u, A_A_re, A_A_im, A_B_re, A_B_im, A_C_re, A_C_im, A_log_dt, A_Dskip, B_x, B_w_gate, B_w_up, B_w_down):
    def _A_ref(u, A_re, A_im, B_re, B_im, C_re, C_im, log_dt, Dskip):
        Bsz, L, D = u.shape
        dt = torch.exp(log_dt)[:, None]
        A = A_re + 1j * A_im
        Bc = B_re + 1j * B_im
        Cc = C_re + 1j * C_im
        logdA = dt * A
        dB = dt * Bc
        l = (lambda x, dt: x.to(dt))(torch.arange(L), A_re.dtype)
        P = torch.exp(logdA[:, :, None] * l[None, None, :])
        K = torch.einsum("dn,dnl,dn->dl", Cc, P, dB).real
        L2 = 2 * L
        Kp = _pad(K, ((0, 0), (0, L)))
        up = (lambda x, *d: x.permute(*d))(u, 0, 2, 1)
        up = _pad(up, ((0, 0), (0, 0), (0, L)))
        Kf = (lambda x, axes=(-2,-1): torch.fft.rfft2(x.float(), dim=axes))(Kp[:, None, :], axes=(-2, -1))
        Uf = (lambda x, axes=(-2,-1): torch.fft.rfft2(x.float(), dim=axes))(up[:, :, None, :], axes=(-2, -1))
        Yf = Uf * Kf[None, :, :, :]
        y = (lambda x, s, axes=(-2,-1): torch.fft.irfft2(x, s=s, dim=axes).to(torch.bfloat16))(Yf, (1, L2), axes=(-2, -1))[:, :, 0, :L]
        y = (lambda x, *d: x.permute(*d))(y, 0, 2, 1) + u * Dskip[None, None, :]
        return y

    def _B_ref(x, w_gate, w_up, w_down):
        g = torch.einsum("bsd,df->bsf", x, w_gate)
        u = torch.einsum("bsd,df->bsf", x, w_up)
        h = g * u
        return torch.einsum("bsf,fd->bsd", h, w_down)

    x = A_u
    h = x + _A_ref(_layernorm(x, axis=-1), A_A_re, A_A_im, A_B_re, A_B_im, A_C_re, A_C_im, A_log_dt, A_Dskip)
    h2 = h + _B_ref(_layernorm(h, axis=-1), B_w_gate, B_w_up, B_w_down)
    return h2
```

```python
import re

REG_RE = re.compile(r'(?<![\w.])([vas])(?:(\d+)|\[(\d+):(\d+)\])(?![\w])')

TRANS = ('v_exp_f32', 'v_log_f32', 'v_rcp_f32', 'v_rsq_f32', 'v_sqrt_f32', 'v_sin_f32', 'v_cos_f32',
         'v_rcp_iflag_f32', 'v_exp_f16', 'v_log_f16', 'v_rcp_f16', 'v_rsq_f16', 'v_sqrt_f16')


def regs_of(tok):
    out = set()
    t = tok.strip()
    for m in REG_RE.finditer(t):
        k = m.group(1)
        if m.group(2) is not None:
            out.add((k, int(m.group(2))))
        else:
            for i in range(int(m.group(3)), int(m.group(4)) + 1):
                out.add((k, i))
    if re.search(r'(?<![\w])vcc(?![\w])', t):
        out.add(('vcc', 0))
    if re.search(r'(?<![\w])vcc_lo|vcc_hi(?![\w])', t):
        out.add(('vcc', 0))
    if re.search(r'(?<![\w])exec(?![\w])', t):
        out.add(('exec', 0))
    if re.search(r'(?<![\w])m0(?![\w])', t):
        out.add(('m0', 0))
    return out


def split_ops(s):
    out, depth, cur = [], 0, ''
    for ch in s:
        if ch in '[(':
            depth += 1
        elif ch in '])':
            depth -= 1
        if ch == ',' and depth == 0:
            out.append(cur.strip())
            cur = ''
        else:
            cur += ch
    if cur.strip():
        out.append(cur.strip())
    return out


class Ins:
    __slots__ = ('text', 'op', 'kind', 'w', 'r', 'mf', 'label', 'target', 'ws', 'dpp', 'raw', 'srcc', 'srcab', 'dstregs')

    def __init__(self, text):
        self.text = text
        self.label = None
        self.target = None
        self.w = set()
        self.r = set()
        self.mf = 0
        self.ws = 1
        self.dpp = False
        self.srcc = set()
        self.srcab = set()
        self.kind = 'other'
        body = text.split(';')[0].strip()
        body = body.split('//')[0].strip()
        self.op = ''
        if not body:
            self.kind = 'none'
            self.ws = 0
            return
        if body.endswith(':') and ' ' not in body:
            self.kind = 'label'
            self.label = body[:-1]
            self.ws = 0
            return
        if body.startswith('.'):
            self.kind = 'dir'
            self.ws = 0
            return
        parts = body.split(None, 1)
        op = parts[0]
        self.op = op
        rest = parts[1] if len(parts) > 1 else ''
        ops = split_ops(rest)
        mods = ''
        if ops:
            last = ops[-1]
            depth = 0
            cut = None
            for i, ch in enumerate(last):
                if ch in '[(':
                    depth += 1
                elif ch in '])':
                    depth -= 1
                elif ch in ' \t' and depth == 0:
                    cut = i
                    break
            if cut is not None:
                mods = last[cut:]
                ops[-1] = last[:cut]
        base = re.sub(r'_(e32|e64|dpp|sdwa)$', '', op)
        R = [regs_of(o) for o in ops]
        if op == 's_nop':
            self.kind = 'nop'
            self.ws = int(ops[0], 0) + 1
        elif op.startswith('s_cbranch') or op == 's_branch':
            self.kind = 'branch'
            self.target = ops[0]
            if 'vcc' in op:
                self.r.add(('vcc', 0))
            if 'exec' in op:
                self.r.add(('exec', 0))
        elif op == 's_endpgm':
            self.kind = 'end'
        elif op.startswith('v_mfma'):
            self.kind = 'mfma'
            if '32x32x16' in op or '32x32x8' in op or 'i32_32x32x32' in op:
                self.mf = 8
            elif '16x16x32' in op or '16x16x16' in op or '16x16x64' in op:
                self.mf = 4
            elif '32x32x2_f32' in op:
                self.mf = 16
            elif '16x16x4_f32' in op:
                self.mf = 8
            else:
                raise ValueError('unknown mfma ' + op)
            self.w = R[0]
            self.srcab = R[1] | R[2]
            self.srcc = R[3]
            self.r = self.srcab | self.srcc
        elif op.startswith('v_'):
            self.kind = 'valu'
            if base in TRANS:
                self.kind = 'trans'
            if op.endswith('_dpp') or 'row_' in mods or 'quad_perm' in mods or 'wave_' in mods:
                self.dpp = True
            if base.startswith('v_cmpx'):
                self.w = R[0] | {('exec', 0)}
                for x in R[1:]:
                    self.r |= x
            elif base.startswith('v_cmp'):
                self.w = R[0]
                for x in R[1:]:
                    self.r |= x
            elif base in ('v_readfirstlane_b32', 'v_readlane_b32'):
                self.kind = 'readlane'
                self.w = R[0]
                for x in R[1:]:
                    self.r |= x
            elif base in ('v_permlane32_swap_b32', 'v_permlane16_swap_b32'):
                self.kind = 'permlane'
                self.w = R[0] | R[1]
                self.r = R[0] | R[1]
            elif base in ('v_add_co_u32', 'v_sub_co_u32', 'v_subrev_co_u32', 'v_addc_co_u32', 'v_subb_co_u32',
                          'v_div_scale_f32', 'v_mad_u64_u32'):
                self.w = R[0] | R[1]
                for x in R[2:]:
                    self.r |= x
            else:
                self.w = R[0]
                for x in R[1:]:
                    self.r |= x
                if base in ('v_fmac_f32', 'v_dot2c_f32_bf16', 'v_pk_fmac_f16', 'v_writelane_b32', 'v_mac_f32') or self.dpp:
                    self.r |= R[0]
                if base == 'v_cndmask_b32' and len(ops) == 3:
                    self.r.add(('vcc', 0))
            self.r.add(('exec_impl', 0))
        elif op.startswith('buffer_') or op.startswith('global_') or op.startswith('flat_') or op.startswith('scratch_'):
            self.kind = 'vmem'
            is_lds = bool(re.search(r'\blds\b', mods)) or 'load_lds' in op
            if 'store' in op or 'atomic' in op or 'wbl2' in op or '_inv' in op:
                for x in R:
                    self.r |= x
                if 'atomic' in op and 'sc0' in mods and op.startswith('buffer'):
                    self.w = R[0]
                if 'atomic' in op and 'sc0' in mods and op.startswith('global'):
                    self.w = R[0]
                if 'store' in op and ('x4' in op or 'x3' in op):
                    self.kind = 'vmem_wstore'
                    self.srcc = R[1] if op.startswith('global') else R[0]
            elif is_lds:
                for x in R:
                    self.r |= x
                self.r.add(('m0', 0))
                self.kind = 'vmem_lds'
            else:
                self.w = R[0]
                for x in R[1:]:
                    self.r |= x
        elif op.startswith('ds_'):
            self.kind = 'ds'
            if 'write' in op or op.startswith('ds_add') or op.startswith('ds_max') or op.startswith('ds_min'):
                for x in R:
                    self.r |= x
            else:
                self.w = R[0]
                for x in R[1:]:
                    self.r |= x
        elif op.startswith('s_load') or op.startswith('s_buffer_load') or op in ('s_memtime', 's_memrealtime'):
            self.kind = 'smem'
            self.w = R[0]
            for x in R[1:]:
                self.r |= x
        elif op.startswith('s_'):
            self.kind = 'salu'
            if op.startswith('s_cmp') or op in ('s_waitcnt', 's_barrier', 's_setprio', 's_sleep', 's_sendmsg', 's_bitcmp1_b32', 's_bitcmp0_b32'):
                for x in R:
                    self.r |= x
            else:
                if R:
                    self.w = R[0]
                for x in R[1:]:
                    self.r |= x
                if 'saveexec' in op:
                    self.w = self.w | {('exec', 0)}
        else:
            raise ValueError('cannot classify: ' + text)


def _isv(regs):
    return {x for x in regs if x[0] in ('v', 'a')}


def _iss(regs):
    return {x for x in regs if x[0] in ('s', 'vcc')}


MF_RAW = {2: 5, 4: 8, 8: 12, 16: 20}
MF_CPART = {2: 4, 4: 6, 8: 10, 16: 18}
MF_WAR = {2: 1, 4: 3, 8: 7, 16: 15}


def need(p, c):
    n = 0
    pv = p.kind in ('valu', 'trans', 'readlane', 'permlane')
    cv = c.kind in ('valu', 'trans', 'readlane', 'permlane')
    if pv:
        wv = _isv(p.w)
        if c.kind == 'mfma' and (wv & c.r):
            n = max(n, 2)
        if p.kind == 'trans' and cv and c.kind != 'trans' and (wv & (c.r | c.w)):
            n = max(n, 1)
        if p.kind == 'trans' and (c.kind in ('vmem', 'vmem_wstore', 'ds', 'vmem_lds')) and (wv & c.r):
            n = max(n, 1)
        if c.kind == 'readlane' and (wv & c.r):
            n = max(n, 1)
        if c.kind == 'permlane' and (wv & c.r):
            n = max(n, 2)
        if cv and c.dpp and (wv & c.r):
            n = max(n, 2)
        ws = _iss(p.w)
        if ws:
            if cv and (ws & c.r):
                n = max(n, 4 if c.kind == 'readlane' or c.op.startswith('v_writelane') else 2)
            if c.kind.startswith('vmem') and (ws & c.r):
                n = max(n, 5)
            if c.kind in ('salu', 'branch', 'smem') and (ws & c.r):
                n = max(n, 2)
        if ('exec', 0) in p.w:
            if cv and c.dpp:
                n = max(n, 5)
            if c.kind in ('readlane', 'permlane', 'mfma'):
                n = max(n, 4)
    if p.kind == 'mfma':
        d = p.w
        if c.kind == 'mfma':
            if d & c.srcab:
                n = max(n, MF_RAW[p.mf])
            if d & c.srcc:
                if c.srcc == d and c.mf == p.mf:
                    n = max(n, 2 if p.mf == 2 else 0)
                else:
                    n = max(n, MF_CPART[p.mf])
            elif d & c.w:
                n = max(n, MF_RAW[p.mf])
        elif c.kind not in ('salu', 'nop', 'branch', 'smem', 'other', 'end'):
            if d & (c.r | c.w):
                n = max(n, MF_RAW[p.mf])
        if cv and (p.srcc & c.w):
            n = max(n, MF_WAR[p.mf])
    if p.kind == 'vmem_wstore':
        if (p.srcc & c.w):
            n = max(n, 2)
    if p.kind == 'salu' and ('m0', 0) in p.w and c.kind == 'vmem_lds':
        n = max(n, 1)
    return n


MAXWS = 21


class Asm:
    def __init__(self):
        self.lines = []

    def __call__(self, s, *a):
        for ln in s.split('\n'):
            ln = ln.strip()
            if ln:
                self.lines.append(ln)

    def comment(self, s):
        self.lines.append('; ' + s)

    def label(self, l):
        self.lines.append(l + ':')

    def text(self):
        return '\n'.join(self.lines) + '\n'


def fix_hazards(lines, verbose=False):
    ins = [Ins(l) for l in lines]
    n = len(ins)
    labels = {x.label: i for i, x in enumerate(ins) if x.kind == 'label'}
    br = {}
    for i, x in enumerate(ins):
        if x.kind == 'branch':
            if x.target not in labels:
                raise ValueError('unknown label ' + x.target)
            br.setdefault(labels[x.target], []).append(i)
    pre = [0] * n

    def preds(i):
        out = []
        if i > 0 and not (ins[i - 1].op == 's_branch' or ins[i - 1].kind == 'end'):
            out.append(i - 1)
        if ins[i].kind == 'label':
            out += br.get(i, [])
        return out
    total = 0
    for i, c in enumerate(ins):
        if c.ws == 0 or c.kind == 'nop':
            continue
        worst = 0
        why = None
        stack = [(j, 0) for j in preds(i)]
        seen = {}
        while stack:
            j, dist = stack.pop()
            if dist >= MAXWS or seen.get(j, 99) <= dist:
                continue
            seen[j] = dist
            p = ins[j]
            if p.ws:
                nd = need(p, c)
                if nd - dist > worst:
                    worst = nd - dist
                    why = p
            nd2 = dist + p.ws + pre[j]
            for q in preds(j):
                stack.append((q, nd2))
        if worst > 0:
            pre[i] = worst
            total += worst
            if verbose:
                print('hazard +%d: %s  <-  %s' % (worst, c.text, why.text))
    out = []
    for i, x in enumerate(ins):
        k = pre[i]
        while k > 0:
            t = min(k, 16)
            out.append('s_nop %d' % (t - 1))
            k -= t
        out.append(x.text)
    return out, total
```

```python
import struct
from asmlib import *

def fhex(x):
    return '0x%08x' % struct.unpack('<I', struct.pack('<f', x))[0]

L = 2048; D = 448; N = 256; F = 1792
KA = dict(x=0, a_re=8, a_im=16, b_re=24, b_im=32, c_re=40, c_im=48, log_dt=56, dskip=64, bx=72,
          wg=80, wu=88, wd=96, out=104, dbg=112, ws=120)
UT_OFF = 0x000000
XT_OFF = 0x200000
HT_OFF = 0x400000
KR_OFF = 0x600000
KR_STRIDE = 4160
CS_OFF = 0x800000
HID_OFF = 0x900000
ACT_BYTES = L * D * 2
HID_BYTES = L * F * 2

def srd(a, s, lo, hi, nbytes, add=0):
    if add:
        a(f's_add_u32 s{s}, s{lo}, {add}')
        a(f's_addc_u32 s{s+1}, s{hi}, 0')
    else:
        a(f's_mov_b32 s{s}, s{lo}')
        a(f's_mov_b32 s{s+1}, s{hi}')
    a(f's_mov_b32 s{s+2}, {nbytes}')
    a(f's_mov_b32 s{s+3}, 0x20000')

def kernel_text(name, body, vgpr, sgpr=96, accum=None, agpr=0):
    lines, n = fix_hazards(body.lines)
    acc = accum if accum is not None else ((vgpr + 3) // 4) * 4
    nfv = acc + agpr if agpr else vgpr
    hdr = f'''.text
.globl {name}
.p2align 8
.type {name},@function
{name}:
'''
    tail = f'''
.section .rodata,"a"
.p2align 6
.amdhsa_kernel {name}
  .amdhsa_next_free_vgpr {nfv}
  .amdhsa_next_free_sgpr {sgpr}
  .amdhsa_accum_offset {acc}
  .amdhsa_group_segment_fixed_size 0
  .amdhsa_kernarg_size 128
  .amdhsa_user_sgpr_count 2
  .amdhsa_user_sgpr_kernarg_segment_ptr 1
  .amdhsa_system_sgpr_workgroup_id_x 1
.end_amdhsa_kernel
'''
    return hdr + '\n'.join(lines) + '\n' + tail

def cmul(a, c, x, y, t):
    a(f'v_pk_mul_f32 v[{t}:{t+1}], v[{x}:{x+1}], v[{y}:{y+1}] op_sel:[0,0] op_sel_hi:[1,0]')
    a(f'v_pk_fma_f32 v[{c}:{c+1}], v[{x}:{x+1}], v[{y}:{y+1}], v[{t}:{t+1}] op_sel:[1,1,0] op_sel_hi:[0,1,1] neg_lo:[1,0,0]')

import os
STAMPS = os.environ.get('STAMPS', '0') == '1'
STAMP_OFF = 0x3000000
STAMP_S0 = 76
def stamp_begin(a):
    if not STAMPS: return
    a(f's_memrealtime s[{STAMP_S0}:{STAMP_S0+1}]')
    a(f's_memtime s[{STAMP_S0+2}:{STAMP_S0+3}]')
def stamp(a, i):
    if not STAMPS: return
    a(f's_memtime s[{STAMP_S0+2+2*i}:{STAMP_S0+3+2*i}]')
def stamp_end(a, kidx, n, tag):
    if not STAMPS: return
    a(f's_memrealtime s[{STAMP_S0+2+2*(n+1)}:{STAMP_S0+3+2*(n+1)}]')
    a(f's_load_dwordx2 s[4:5], s[0:1], {KA["ws"]}')
    a('s_waitcnt lgkmcnt(0)')
    srd(a, 8, 4, 5, 1 << 20, STAMP_OFF + kidx * (1 << 17))
    a('s_mov_b64 exec, -1')
    a('v_cmp_eq_u32 vcc, 0, v0')
    a('s_and_saveexec_b64 s[4:5], vcc')
    a(f's_cbranch_execz STAMP_DONE_{tag}')
    a('s_lshl_b32 s3, s2, 6')
    a('v_mov_b32 v1, s3')
    a(f'v_mov_b32 v2, s{STAMP_S0}')
    a('buffer_store_dword v2, v1, s[8:11], 0 offen')
    for i in range(1, n + 1):
        a(f's_sub_u32 s6, s{STAMP_S0+2+2*i}, s{STAMP_S0+2}')
        a('v_mov_b32 v2, s6')
        a(f'buffer_store_dword v2, v1, s[8:11], 0 offen offset:{4*i}')
    a(f'v_mov_b32 v2, s{STAMP_S0+2+2*(n+1)}')
    a(f'buffer_store_dword v2, v1, s[8:11], 0 offen offset:60')
    a.label(f'STAMP_DONE_{tag}')
```

```python
from common import *

LN_WGS = 128; CS_WGS = 56; KG_WGS = 224
K1_GRID = LN_WGS + CS_WGS + KG_WGS
SK = 848
K1_LDS = 64 * SK

def dpp_reduce(a, regs):
    steps = ['row_shr:1 row_mask:0xf bank_mask:0xf bound_ctrl:0', 'row_shr:2 row_mask:0xf bank_mask:0xf bound_ctrl:0',
             'row_shr:4 row_mask:0xf bank_mask:0xf bound_ctrl:0', 'row_shr:8 row_mask:0xf bank_mask:0xf bound_ctrl:0',
             'row_bcast:15 row_mask:0xa bank_mask:0xf', 'row_bcast:31 row_mask:0xc bank_mask:0xf']
    for st in steps:
        for r in regs:
            a(f'v_add_f32_dpp v{r}, v{r}, v{r} {st}')

def ln_role(a):
    a.label('K1_LN')
    a(f'''
    s_load_dwordx2 s[4:5], s[0:1], {KA['x']}
    s_load_dwordx2 s[6:7], s[0:1], {KA['ws']}
    v_and_b32 v1, 63, v0
    v_lshrrev_b32 v2, 6, v0
    s_and_b32 s20, s2, 7
    s_lshl_b32 s20, s20, 4
    s_lshr_b32 s21, s2, 3
    s_add_u32 s20, s20, s21
    v_readfirstlane_b32 s22, v2      ; wave
    s_lshl_b32 s23, s20, 4           ; t0
    s_lshl_b32 s24, s22, 2
    s_add_u32 s24, s24, s23
    s_mul_i32 s25, s24, 896
    v_lshlrev_b32 v3, 4, v1
    v_cmp_gt_u32 vcc, 56, v1
    v_mov_b32 v4, 0x40000000
    v_cndmask_b32 v3, v4, v3, vcc
    v_mov_b32 v5, 0
    v_mov_b32 v6, 1.0
    v_cndmask_b32 v5, v5, v6, vcc
    s_waitcnt lgkmcnt(0)
    ''')
    stamp(a, 1)
    srd(a, 8, 4, 5, ACT_BYTES)
    for r in range(4):
        a(f'buffer_load_dwordx4 v[{8+4*r}:{11+4*r}], v3, s[8:11], s25 offen offset:{r*896}')
    srd(a, 12, 6, 7, ACT_BYTES, UT_OFF)
    srd(a, 16, 6, 7, ACT_BYTES, XT_OFF)
    for r in range(4):
        a(f's_waitcnt vmcnt({3-r})')
        for i in range(4):
            a(f'v_lshlrev_b32 v{24+8*r+2*i}, 16, v{8+4*r+i}')
            a(f'v_and_b32 v{25+8*r+2*i}, 0xffff0000, v{8+4*r+i}')
    stamp(a, 2)
    F0 = lambda r, i: 24 + 8*r + 2*i
    S = lambda r: 56 + 2*r
    for r in range(4):
        a(f'v_pk_add_f32 v[{S(r)}:{S(r)+1}], v[{F0(r,0)}:{F0(r,0)+1}], v[{F0(r,1)}:{F0(r,1)+1}]')
    for r in range(4):
        a(f'v_pk_add_f32 v[{S(r)}:{S(r)+1}], v[{S(r)}:{S(r)+1}], v[{F0(r,2)}:{F0(r,2)+1}]')
    for r in range(4):
        a(f'v_pk_add_f32 v[{S(r)}:{S(r)+1}], v[{S(r)}:{S(r)+1}], v[{F0(r,3)}:{F0(r,3)+1}]')
    for r in range(4):
        a(f'v_add_f32 v{64+r}, v{S(r)}, v{S(r)+1}')
    dpp_reduce(a, [64, 65, 66, 67])
    for r in range(4):
        a(f'v_mul_f32 v{64+r}, {fhex(1.0/448)}, v{64+r}')
    for r in range(4):
        a(f'v_readlane_b32 s{28+2*r}, v{64+r}, 63')
    T = lambda i: 72 + 2*i
    for r in range(4):
        for i in range(4):
            a(f'v_pk_add_f32 v[{T(i)}:{T(i)+1}], v[{F0(r,i)}:{F0(r,i)+1}], s[{28+2*r}:{29+2*r}] op_sel_hi:[1,0] neg_lo:[0,1] neg_hi:[0,1]')
        a(f'v_pk_mul_f32 v[{S(r)}:{S(r)+1}], v[{T(0)}:{T(0)+1}], v[{T(0)}:{T(0)+1}]')
        for i in range(1, 4):
            a(f'v_pk_fma_f32 v[{S(r)}:{S(r)+1}], v[{T(i)}:{T(i)+1}], v[{T(i)}:{T(i)+1}], v[{S(r)}:{S(r)+1}]')
    for r in range(4):
        a(f'v_add_f32 v{68+r}, v{S(r)}, v{S(r)+1}')
    for r in range(4):
        a(f'v_mul_f32 v{68+r}, v{68+r}, v5')
    dpp_reduce(a, [68, 69, 70, 71])
    for r in range(4):
        a(f'v_mul_f32 v{68+r}, {fhex(1.0/448)}, v{68+r}')
    for r in range(4):
        a(f'v_cvt_pk_bf16_f32 v{80+r}, v{64+r}, v{68+r}')
    for r in range(4):
        a(f'v_lshlrev_b32 v{64+r}, 16, v{80+r}')
        a(f'v_and_b32 v{68+r}, 0xffff0000, v{80+r}')
    for r in range(4):
        a(f'v_add_f32 v{68+r}, {fhex(1e-5)}, v{68+r}')
    for r in range(4):
        a(f'v_cvt_pk_bf16_f32 v{68+r}, v{68+r}, v{68+r}')
    for r in range(4):
        a(f'v_and_b32 v{68+r}, 0xffff0000, v{68+r}')
    for r in range(4):
        a(f'v_sqrt_f32 v{68+r}, v{68+r}')
    for r in range(4):
        a(f'v_cvt_pk_bf16_f32 v{68+r}, v{68+r}, v{68+r}')
    for r in range(4):
        a(f'v_and_b32 v{68+r}, 0xffff0000, v{68+r}')
    for r in range(4):
        a(f'v_rcp_f32 v{68+r}, v{68+r}')
    for r in range(4):
        a(f'v_readlane_b32 s{28+2*r}, v{64+r}, 63')
    for r in range(4):
        a(f'v_readlane_b32 s{36+2*r}, v{68+r}, 63')
    a('s_mul_i32 s26, s22, 3840')
    a('v_lshlrev_b32 v7, 4, v1')
    a('v_add_u32 v7, s26, v7')
    for r in range(4):
        for i in range(4):
            a(f'v_pk_add_f32 v[{T(i)}:{T(i)+1}], v[{F0(r,i)}:{F0(r,i)+1}], s[{28+2*r}:{29+2*r}] op_sel_hi:[1,0] neg_lo:[0,1] neg_hi:[0,1]')
        for i in range(4):
            a(f'v_cvt_pk_bf16_f32 v{84+i}, v{T(i)}, v{T(i)+1}')
        for i in range(4):
            a(f'v_lshlrev_b32 v{T(i)}, 16, v{84+i}')
            a(f'v_and_b32 v{T(i)+1}, 0xffff0000, v{84+i}')
        for i in range(4):
            a(f'v_pk_mul_f32 v[{T(i)}:{T(i)+1}], v[{T(i)}:{T(i)+1}], s[{36+2*r}:{37+2*r}] op_sel_hi:[1,0]')
        for i in range(4):
            a(f'v_cvt_pk_bf16_f32 v{88+4*r+i}, v{T(i)}, v{T(i)+1}')
    a('s_mov_b64 s[44:45], exec')
    a('s_mov_b32 s46, -1')
    a('s_mov_b32 s47, 0x00ffffff')
    a('s_mov_b64 exec, s[46:47]')
    for r in range(4):
        a(f'ds_write_b128 v7, v[{88+4*r}:{91+4*r}] offset:{r*960}')
        a(f'ds_write_b128 v7, v[{8+4*r}:{11+4*r}] offset:{15360 + r*960}')
    a('s_mov_b64 exec, s[44:45]')
    a('s_waitcnt lgkmcnt(0)')
    stamp(a, 3)
    a('s_barrier')
    a('''
    v_lshrrev_b32 v24, 4, v1
    v_bfe_u32 v25, v1, 2, 2
    v_and_b32 v26, 3, v1
    v_mul_u32_u24 v27, 960, v25
    v_lshlrev_b32 v24, 5, v24
    v_lshlrev_b32 v26, 3, v26
    v_add3_u32 v27, v27, v24, v26
    s_lshl_b32 s26, s22, 7
    v_add_u32 v27, s26, v27
    v_lshlrev_b32 v28, 12, v1
    s_lshl_b32 s27, s22, 18          ; cg*64*4096
    s_lshl_b32 s48, s23, 1
    s_add_u32 s27, s27, s48
    v_add_u32 v28, s27, v28
    ''')
    for rep in range(2):
        if rep == 1:
            a('s_cmp_eq_u32 s22, 3')
            a('s_cbranch_scc1 K1_LN_END')
            a('v_add_u32 v27, 512, v27')
            a('v_add_u32 v28, 0x100000, v28')
        b = 32 + 16*rep
        for rq in range(4):
            a(f'ds_read_b64_tr_b16 v[{b+2*rq}:{b+2*rq+1}], v27 offset:{rq*3840}')
        for rq in range(4):
            a(f'ds_read_b64_tr_b16 v[{b+8+2*rq}:{b+8+2*rq+1}], v27 offset:{15360 + rq*3840}')
        a('s_waitcnt lgkmcnt(4)')
        a(f'buffer_store_dwordx4 v[{b}:{b+3}], v28, s[12:15], 0 offen')
        a(f'buffer_store_dwordx4 v[{b+4}:{b+7}], v28, s[12:15], 0 offen offset:16')
        a('s_waitcnt lgkmcnt(0)')
        a(f'buffer_store_dwordx4 v[{b+8}:{b+11}], v28, s[16:19], 0 offen')
        a(f'buffer_store_dwordx4 v[{b+12}:{b+15}], v28, s[16:19], 0 offen offset:16')
    a.label('K1_LN_END')
    stamp(a, 4)
    if STAMPS: a('s_waitcnt vmcnt(0)')
    stamp(a, 5)
    stamp_end(a, 0, 5, 'ln')
    a('s_endpgm')

def cs_role(a):
    a.label('K1_CS')
    a(f'''
    s_sub_u32 s20, s2, {LN_WGS}          ; j in [0,56)
    s_cmp_lt_u32 s20, 28
    s_mov_b32 s21, {KA['wu']}
    s_cselect_b32 s21, {KA['wg']}, s21
    s_cselect_b32 s22, 0, 28
    s_cselect_b32 s23, 0, {F*4}
    s_sub_u32 s20, s20, s22
    s_add_u32 s24, s0, s21
    s_addc_u32 s25, s1, 0
    s_load_dwordx2 s[4:5], s[24:25], 0
    s_load_dwordx2 s[6:7], s[0:1], {KA['ws']}
    v_and_b32 v1, 7, v0                  ; cc
    v_lshrrev_b32 v2, 3, v0              ; rg 0..31
    v_mul_u32_u24 v3, {14*F*2}, v2
    v_lshlrev_b32 v4, 4, v1
    v_add_u32 v3, v3, v4
    s_lshl_b32 s26, s20, 7
    s_waitcnt lgkmcnt(0)
    ''')
    srd(a, 8, 4, 5, D*F*2)
    srd(a, 12, 6, 7, 2*F*4, CS_OFF)
    for i in range(14):
        if i == 0:
            a('s_mov_b32 s27, s26')
        else:
            a(f's_add_u32 s27, s27, {F*2}')
        a(f'buffer_load_dwordx4 v[{8+4*i}:{11+4*i}], v3, s[8:11], s27 offen')
    A = 64
    for i in range(14):
        a(f's_waitcnt vmcnt({13-i})')
        dst = A if i == 0 else A + 8
        for k in range(4):
            a(f'v_lshlrev_b32 v{dst+2*k}, 16, v{8+4*i+k}')
            a(f'v_and_b32 v{dst+2*k+1}, 0xffff0000, v{8+4*i+k}')
        if i:
            for k in range(4):
                a(f'v_pk_add_f32 v[{A+2*k}:{A+2*k+1}], v[{A+2*k}:{A+2*k+1}], v[{A+8+2*k}:{A+8+2*k+1}]')
    a(f'''
    v_lshlrev_b32 v5, 5, v0
    ds_write_b128 v5, v[{A}:{A+3}]
    ds_write_b128 v5, v[{A+4}:{A+7}] offset:16
    v_and_b32 v6, 63, v0                 ; c
    v_lshrrev_b32 v7, 6, v0              ; part
    v_lshrrev_b32 v80, 3, v6
    v_and_b32 v81, 7, v6
    v_lshlrev_b32 v80, 5, v80
    v_lshlrev_b32 v81, 2, v81
    v_lshlrev_b32 v82, 11, v7
    v_add3_u32 v80, v80, v81, v82
    s_waitcnt lgkmcnt(0)
    s_barrier
    ''')
    for i in range(8):
        a(f'ds_read_b32 v{84+i}, v80 offset:{i*256}')
    a('s_waitcnt lgkmcnt(0)')
    for i in range(1, 8):
        a(f'v_add_f32 v84, v84, v{84+i}')
    a(f'''
    v_lshlrev_b32 v5, 2, v0
    ds_write_b32 v5, v84 offset:8192
    s_waitcnt lgkmcnt(0)
    s_barrier
    v_cmp_gt_u32 vcc, 64, v0
    s_and_saveexec_b64 s[30:31], vcc
    s_cbranch_execz K1_END
    ds_read_b32 v84, v5 offset:8192
    ds_read_b32 v85, v5 offset:{8192+256}
    ds_read_b32 v86, v5 offset:{8192+512}
    ds_read_b32 v87, v5 offset:{8192+768}
    s_lshl_b32 s28, s20, 8               ; col0*4
    s_add_u32 s28, s28, s23
    s_waitcnt lgkmcnt(0)
    v_add_f32 v84, v84, v85
    v_add_f32 v86, v86, v87
    v_add_f32 v84, v84, v86
    buffer_store_dword v84, v5, s[12:15], s28 offen
    s_endpgm
    ''')

ROWS_F = list(range(8)) + [256, 258, 260, 262] + [512, 516, 768, 772] + [1024, 1280, 1536, 1792] + [2048]

def kg_role(a):
    import math
    a.label('K1_KG')
    a(f'''
    s_sub_u32 s20, s2, {LN_WGS + CS_WGS}     ; j in [0,224)
    s_load_dwordx4 s[24:27], s[0:1], {KA['a_re']}
    s_load_dwordx4 s[28:31], s[0:1], {KA['b_re']}
    s_load_dwordx4 s[32:35], s[0:1], {KA['c_re']}
    s_load_dwordx2 s[36:37], s[0:1], {KA['log_dt']}
    s_load_dwordx2 s[6:7], s[0:1], {KA['ws']}
    s_lshl_b32 s21, s20, 10                  ; 2 channels * 512 B
    v_lshlrev_b32 v1, 1, v0                  ; n*2
    v_lshrrev_b32 v2, 6, v0
    v_readfirstlane_b32 s22, v2              ; wave
    s_waitcnt lgkmcnt(0)
    ''')
    stamp(a, 1)
    ptrs = [24, 26, 28, 30, 32, 34]
    for i, p in enumerate(ptrs):
        srd(a, 40 + 4*i, p, p + 1, D*N*2)
    srd(a, 64, 36, 37, D*2)
    srd(a, 68, 6, 7, D*KR_STRIDE, KR_OFF)
    for c in range(2):
        for i in range(6):
            a(f'buffer_load_ushort v{8+8*c+i}, v1, s[{40+4*i}:{43+4*i}], s21 offen offset:{c*512}')
        a(f's_lshl_b32 s23, s20, 2')
        a(f'v_mov_b32 v{8+8*c+6}, s23')
        a(f'buffer_load_ushort v{8+8*c+6}, v{8+8*c+6}, s[64:67], 0 offen offset:{2*c}')
    a('v_lshlrev_b32 v32, 3, v0')
    a('v_sub_u32 v32, 2047, v32')
    for j in range(8):
        a(f'v_subrev_u32 v{33+j}, {j}, v32')
    for j in range(8):
        a(f'v_cvt_f32_u32 v{33+j}, v{33+j}')
    for j in range(0, 8, 2):
        a(f'v_cvt_pk_bf16_f32 v{41+j//2}, v{33+j}, v{34+j}')
    for j in range(0, 8, 2):
        a(f'v_lshlrev_b32 v{33+j}, 16, v{41+j//2}')
        a(f'v_and_b32 v{34+j}, 0xffff0000, v{41+j//2}')
    for j in range(8):
        a(f'v_cvt_u32_f32 v{33+j}, v{33+j}')
    for j in range(8):
        a(f'v_lshlrev_b32 v{24+j}, 2, v{33+j}')
    a(f'''
    v_lshrrev_b32 v3, 2, v0
    v_mul_u32_u24 v3, {SK}, v3
    v_and_b32 v4, 3, v0
    v_lshlrev_b32 v4, 2, v4
    v_add_u32 v3, v3, v4
    v_and_b32 v5, 63, v0                 ; lane
    v_and_b32 v6, 31, v5                 ; i / j
    v_lshrrev_b32 v7, 5, v5              ; g / half
    s_lshl_b32 s23, s22, 4
    v_add_u32 v46, s23, v7
    v_mul_u32_u24 v46, {SK}, v46
    v_lshlrev_b32 v47, 4, v6
    v_add_u32 v46, v46, v47
    s_mul_i32 s23, s22, 3072
    v_lshlrev_b32 v48, 4, v5
    v_add_u32 v49, s23, v48
    s_lshl_b32 s23, s22, 10
    v_add_u32 v50, s23, v48
    ''')
    TOFF = 12288
    for c in range(2):
        P = 8 + 8*c
        a(f's_waitcnt vmcnt({7 if c == 0 else 1})' if c == 0 else 's_waitcnt vmcnt(1)')
        stamp(a, 2 + 3*c)
        for i in range(7):
            a(f'v_lshlrev_b32 v{P+i}, 16, v{P+i}')
        are, aim, bre, bim, cre, cim, ldt = [P+i for i in range(7)]
        a(f'v_mul_f32 v{ldt}, {fhex(math.log2(math.e))}, v{ldt}')
        a(f'v_exp_f32 v{ldt}, v{ldt}')
        a(f'v_cvt_pk_bf16_f32 v{ldt}, v{ldt}, v{ldt}')
        a(f'v_and_b32 v{ldt}, 0xffff0000, v{ldt}')
        a(f'v_mul_f32 v{are}, v{ldt}, v{are}')
        a(f'v_mul_f32 v{aim}, v{ldt}, v{aim}')
        a(f'v_mul_f32 v{are}, {fhex(math.log2(math.e))}, v{are}')
        a(f'v_mul_f32 v{aim}, {fhex(1/(2*math.pi))}, v{aim}')
        a(f'v_mul_f32 v52, v{ldt}, v{bre}')
        a(f'v_mul_f32 v53, v{ldt}, v{bim}')
        a(f'v_mov_b32 v54, v{cre}')
        a(f'v_mov_b32 v55, v{cim}')
        Wr = 56
        cmul(a, Wr, 54, 52, 58)
        def cexp(dst, r, t):
            if r == 1:
                a(f'v_exp_f32 v{t}, v{are}')
                a(f'v_fract_f32 v{t+1}, v{aim}')
            else:
                a(f'v_mul_f32 v{t}, {fhex(float(r))}, v{are}')
                a(f'v_mul_f32 v{t+1}, {fhex(float(r))}, v{aim}')
                a(f'v_exp_f32 v{t}, v{t}')
                a(f'v_fract_f32 v{t+1}, v{t+1}')
            a(f'v_cos_f32 v{dst}, v{t+1}')
            a(f'v_sin_f32 v{dst+1}, v{t+1}')
            a(f'v_pk_mul_f32 v[{dst}:{dst+1}], v[{dst}:{dst+1}], v[{t}:{t+1}] op_sel_hi:[1,0]')
        p1, q, PP = 60, 62, 64
        cexp(p1, 1, 66); cexp(q, 8, 68); cexp(PP, 256, 70)
        pend = []
        wtmp = [100, 101, 102, 103]
        cnt = [0]
        def put(row, pair, isF):
            w = wtmp[cnt[0] % 4]; cnt[0] += 1
            a(f'v_cvt_pk_bf16_f32 v{w}, v{pair}, {"-" if isF else ""}v{pair+1}')
            pend.append((row, w))
            if len(pend) == 2:
                (r0, w0), (r1, w1) = pend
                a(f'ds_write2_b32 v3, v{w0}, v{w1} offset0:{4*r0} offset1:{4*r1}')
                pend.clear()
        def flush():
            if pend:
                (r0, w0), = pend
                a(f'ds_write_b32 v3, v{w0} offset:{16*r0}')
                pend.clear()
        q2 = 72; Ee = 74; Eo = 76; Fa = 78; p2 = 80; p4 = 82; G = 84; H = 86; P2 = 88; t1, t2, t3 = 90, 92, 94
        ER = 21
        cmul(a, q2, q, q, t1)
        cmul(a, p2, p1, p1, t2)
        cmul(a, P2, PP, PP, t3)
        a(f'v_mov_b32 v{Ee}, 1.0')
        a(f'v_mov_b32 v{Ee+1}, 0')
        put(ER + 0, Ee, False)
        put(ER + 1, q, False)
        put(0, Wr, True)
        cmul(a, p4, p2, p2, t1)
        cmul(a, Fa, Wr, p1, t2)
        cmul(a, G, Wr, PP, t3)
        put(ER + 2, q2, False)
        cmul(a, Eo, q, q2, t1)
        put(1, Fa, True)
        put(8, G, True)
        cmul(a, H, Wr, P2, t2)
        cmul(a, Ee, q2, q2, t3)
        put(ER + 3, Eo, False)
        put(12, H, True)
        ops = []
        def e_ops():
            yield lambda: put(ER + 4, Ee, False)
            je, jo = 4, 3
            while True:
                if jo + 2 <= 31:
                    jo += 2
                    yield (lambda j=jo: (cmul(a, Eo, Eo, q2, t1), put(ER + j, Eo, False)))
                if je + 2 <= 31:
                    je += 2
                    yield (lambda j=je: (cmul(a, Ee, Ee, q2, t2), put(ER + j, Ee, False)))
                if jo + 2 > 31 and je + 2 > 31:
                    break
        def f_ops():
            for b in range(2, 8):
                yield (lambda b=b: (cmul(a, Fa, Fa, p1, t3), put(b, Fa, True)))
            yield (lambda: (cmul(a, Fa, H, p4, t3), put(13, Fa, True)))
            for b in (9, 10, 11):
                yield (lambda b=b: (cmul(a, G, G, p2, t3), put(b, G, True)))
            yield (lambda: (cmul(a, G, H, P2, t3), put(16, G, True)))
            yield (lambda: (cmul(a, H, H, PP, t3), put(14, H, True)))
            yield (lambda: (cmul(a, Fa, H, p4, t3), put(15, Fa, True)))
            for b in (17, 18, 19, 20):
                yield (lambda b=b: (cmul(a, G, G, PP, t3), put(b, G, True)))
        eg, fg = e_ops(), f_ops()
        alive = [eg, eg, fg]
        done = set()
        while True:
            progressed = False
            for g in (eg, fg, eg):
                if id(g) in done: continue
                try:
                    next(g)(); progressed = True
                except StopIteration:
                    done.add(id(g))
            if not progressed: break
        flush()
        stamp(a, 3 + 3*c)
        ACC = 104
        a('s_waitcnt lgkmcnt(0)')
        for s in range(8):
            b = 120 + 8*(s % 2)
            if s == 0:
                pass
        def rd(s):
            b = 120 + 8*(s % 4)
            a(f'ds_read_b128 v[{b}:{b+3}], v46 offset:{2*s*SK}')
            a(f'ds_read_b128 v[{b+4}:{b+7}], v46 offset:{2*s*SK + ER*16}')
        for s in range(4): rd(s)
        for s in range(8):
            b = 120 + 8*(s % 4)
            a(f's_waitcnt lgkmcnt({min(6, 2*(7-s))})')
            src = '0' if s == 0 else f'v[{ACC}:{ACC+15}]'
            a(f'v_mfma_f32_32x32x16_bf16 v[{ACC}:{ACC+15}], v[{b}:{b+3}], v[{b+4}:{b+7}], {src}')
            if s + 4 < 8: rd(s + 4)
        a('s_barrier')
        for qd in range(3):
            a(f'ds_write_b128 v49, v[{ACC+4*qd}:{ACC+4*qd+3}] offset:{qd*1024}')
        a('s_waitcnt lgkmcnt(0)')
        a('s_barrier')
        a(f's_cmp_eq_u32 s22, 3')
        a(f's_cbranch_scc1 K1_KG_SKIP{c}')
        for w in range(4):
            a(f'ds_read_b128 v[{120+4*w}:{123+4*w}], v50 offset:{w*3072}')
        a('s_waitcnt lgkmcnt(0)')
        a('v_pk_add_f32 v[120:121], v[120:121], v[124:125]')
        a('v_pk_add_f32 v[122:123], v[122:123], v[126:127]')
        a('v_pk_add_f32 v[128:129], v[128:129], v[132:133]')
        a('v_pk_add_f32 v[130:131], v[130:131], v[134:135]')
        a('v_pk_add_f32 v[120:121], v[120:121], v[128:129]')
        a('v_pk_add_f32 v[122:123], v[122:123], v[130:131]')
        a('v_lshlrev_b32 v136, 5, v6')
        for qq in range(3):
            a(f's_cmp_lg_u32 s22, {qq}')
            a(f's_cbranch_scc1 K1_KG_Q{c}_{qq}')
            for r in range(4):
                row0 = 8*qq + r; row1 = 8*qq + 4 + r
                r0 = ROWS_F[row0]
                if row1 <= 20:
                    r1 = ROWS_F[row1]
                    if row1 == 20:
                        r1 = 2048
                else:
                    r1 = 2304 + r
                a(f'v_mul_u32_u24 v137, {4*(r1 - r0)}, v7')
                a(f'v_add_u32 v137, v137, v136')
                a(f'ds_write_b32 v137, v{120+r} offset:{TOFF + 4*r0}')
            a.label(f'K1_KG_Q{c}_{qq}')
        a.label(f'K1_KG_SKIP{c}')
        a('s_waitcnt lgkmcnt(0)')
        a('s_barrier')
        for j in range(8):
            a(f'ds_read_b32 v{120+j}, v{24+j} offset:{TOFF}')
        a('s_waitcnt lgkmcnt(0)')
        for j in range(0, 8, 2):
            a(f'v_cvt_pk_bf16_f32 v{128+j//2}, v{120+j}, v{121+j}')
        a(f's_lshl_b32 s23, s20, 1')
        a(f's_add_u32 s23, s23, {c}')
        a(f's_mul_i32 s23, s23, {KR_STRIDE}')
        a('v_lshlrev_b32 v136, 4, v0')
        a('buffer_store_dwordx4 v[128:131], v136, s[68:71], s23 offen')
        a('v_mov_b32 v132, 0\nv_mov_b32 v133, 0\nv_mov_b32 v134, 0\nv_mov_b32 v135, 0')
        a('v_cmp_gt_u32 vcc, 4, v0')
        a('s_and_saveexec_b64 s[72:73], vcc')
        a(f's_cbranch_execz K1_KG_Z{c}')
        a('v_add_u32 v137, 4096, v136')
        a('buffer_store_dwordx4 v[132:135], v137, s[68:71], s23 offen')
        a.label(f'K1_KG_Z{c}')
        a('s_mov_b64 exec, s[72:73]')
        stamp(a, 4 + 3*c)
        if c == 0:
            a('s_barrier')
    if STAMPS: a('s_waitcnt vmcnt(0)')
    stamp(a, 8)
    stamp_end(a, 0, 8, 'kg')
    a('s_endpgm')

def gen_k1():
    a = Asm()
    stamp_begin(a)
    a(f'''
    s_cmp_lt_u32 s2, {LN_WGS}
    s_cbranch_scc1 K1_LN
    s_cmp_lt_u32 s2, {LN_WGS + CS_WGS}
    s_cbranch_scc1 K1_CS
    s_cmp_lt_u32 s2, {K1_GRID}
    s_cbranch_scc1 K1_KG
    ''')
    a.label('K1_END')
    a('s_endpgm')
    ln_role(a); cs_role(a); kg_role(a)
    return kernel_text('k1_kernel', a, vgpr=152, sgpr=102)
```

```python
from common import *

K2_GRID = 224
CPY = 4160
UOFF = 8 * CPY + 480
CH_LDS = 37888
K2_LDS = 2 * CH_LDS
ACC = 16; PRE = 32; BR = 64; AR = 96
PD = 4

def schedule(role):
    steps = []
    if role == 'Q':
        tiles = [5, 4, 3, 2]
        for e in range(40, -8, -1):
            mf = []
            for sl, h in enumerate(tiles):
                i = 8*h - e
                if 0 <= i <= 8*h + 7: mf.append((sl, i, ('B', e)))
            steps.append(dict(loads=[('B', e), ('A', 40 - e)], mf=mf))
    else:
        tiles = [7, 6, 1, 0]
        for e in range(56, -8, -1):
            s = 56 - e
            loads = [('B', e), ('A', s)]
            mf = []
            for sl, h in enumerate(tiles[:2]):
                i = 8*h - e
                if 0 <= i <= 8*h + 7: mf.append((sl, i, ('B', e)))
            if s < 16:
                e2 = 8 - s
                loads.append(('C', e2))
                mf.append((2, s, ('C', e2)))
                if s >= 8: mf.append((3, s - 8, ('C', e2)))
            steps.append(dict(loads=loads, mf=mf))
    return tiles, steps

def reg_of(role, kind, idx):
    if kind == 'A':
        ring = 32 if role == 'Q' else 16
        return AR + 4 * (idx % ring)
    if kind == 'B':
        return BR + 4 * ((idx + 8) % 8)
    return AR + 64 + 4 * ((idx + 8) % 8)

def ld(a, role, kind, idx):
    r = reg_of(role, kind, idx)
    if kind == 'A':
        a(f'ds_read_b128 v[{r}:{r+3}], v8 offset:{64*(63-idx)}')
    else:
        a(f'ds_read_b128 v[{r}:{r+3}], v9 offset:{64*(idx+7)}')

def mainloop(a, role):
    tiles, steps = schedule(role)
    n = len(steps)
    for s in range(min(PD, n)):
        for k, i in steps[s]['loads']: ld(a, role, k, i)
    started = set()
    for s, st in enumerate(steps):
        allowed = sum(len(steps[s+k]['loads']) for k in range(1, PD) if s + k < n)
        a(f's_waitcnt lgkmcnt({min(allowed, 15)})')
        nxt = list(steps[s+PD]['loads']) if s + PD < n else []
        for (sl, i, (bk, e)) in st['mf']:
            ar = reg_of(role, 'A', i); br = reg_of(role, bk, e)
            c = ACC + 4*sl
            src = f'v[{c}:{c+3}]' if sl in started else '0'
            started.add(sl)
            a(f'v_mfma_f32_16x16x32_bf16 v[{c}:{c+3}], v[{ar}:{ar+3}], v[{br}:{br+3}], {src}')
            if nxt:
                k, i2 = nxt.pop(0); ld(a, role, k, i2)
        for k, i2 in nxt: ld(a, role, k, i2)
    return tiles

def gen_k2():
    a = Asm()
    stamp_begin(a)
    a(f'''
    s_cmp_ge_u32 s2, {K2_GRID}
    s_cbranch_scc1 K2_END
    s_load_dwordx2 s[4:5], s[0:1], {KA['ws']}
    s_load_dwordx2 s[6:7], s[0:1], {KA['dskip']}
    v_and_b32 v1, 63, v0
    v_lshrrev_b32 v2, 6, v0
    v_readfirstlane_b32 s30, v2          ; wave
    s_lshr_b32 s31, s30, 1
    s_and_b32 s32, s30, 1                ; role 0=P 1=Q
    s_lshl_b32 s33, s2, 1
    s_add_u32 s33, s33, s31              ; channel d
    s_mul_i32 s34, s31, {CH_LDS}
    v_lshlrev_b32 v3, 4, v1              ; lane*16
    s_waitcnt lgkmcnt(0)
    ''')
    stamp(a, 1)
    srd(a, 8, 4, 5, D*KR_STRIDE, KR_OFF)
    srd(a, 12, 4, 5, ACT_BYTES, UT_OFF)
    srd(a, 16, 4, 5, ACT_BYTES, XT_OFF)
    srd(a, 20, 4, 5, ACT_BYTES, HT_OFF)
    srd(a, 24, 6, 7, D*2)
    a(f'''
    s_mul_i32 s35, s33, {KR_STRIDE}
    s_lshl_b32 s36, s32, 3               ; 2*(4*role)
    s_add_u32 s35, s35, s36
    s_mul_i32 s37, s32, {4*CPY}
    s_add_u32 s37, s37, s34
    ''')
    for cc in range(4):
        a(f's_add_u32 m0, s37, {cc*CPY}')
        if cc: a('s_add_u32 s35, s35, 2')
        else: a('s_nop 0')
        for qd in range(4):
            a(f'buffer_load_dwordx4 v3, s[8:11], s35 offen offset:{qd*1024} lds')
    a(f'''
    s_lshl_b32 s38, s33, 12              ; d*4096
    s_lshl_b32 s39, s32, 11              ; role*2048
    s_add_u32 s40, s38, s39
    s_add_u32 s41, s34, s39
    s_add_u32 m0, s41, {UOFF}
    s_nop 0
    buffer_load_dwordx4 v3, s[12:15], s40 offen lds
    buffer_load_dwordx4 v3, s[12:15], s40 offen offset:1024 lds
    ''')
    a('''
    v_and_b32 v4, 15, v1                 ; n / m
    v_lshrrev_b32 v5, 4, v1              ; q / g
    v_lshlrev_b32 v6, 5, v4
    v_lshl_add_u32 v6, v5, 3, v6         ; 32n + 8q
    s_lshl_b32 s42, s33, 1
    v_mov_b32 v7, s42
    buffer_load_ushort v7, v7, s[24:27], 0 offen
    ''')
    a('s_cmp_eq_u32 s32, 0')
    for sl in range(4):
        a(f's_mov_b32 s48, {512*[5,4,3,2][sl]}')
        a(f's_cselect_b32 s{44+sl}, {512*[7,6,1,0][sl]}, s48')
        a(f's_add_u32 s{44+sl}, s{44+sl}, s38')
        a('s_cmp_eq_u32 s32, 0')
    for sl in range(4):
        a(f'buffer_load_dwordx2 v[{PRE+8*sl}:{PRE+8*sl+1}], v6, s[12:15], s{44+sl} offen')
        a(f'buffer_load_dwordx2 v[{PRE+8*sl+4}:{PRE+8*sl+5}], v6, s[16:19], s{44+sl} offen')
    a(f'''
    v_mov_b32 v10, 0
    v_mov_b32 v11, 0
    v_mov_b32 v12, 0
    v_mov_b32 v13, 0
    v_mul_u32_u24 v14, {CPY}, v1
    v_add_u32 v14, s37, v14
    v_cmp_gt_u32 vcc, 4, v1
    s_and_saveexec_b64 s[50:51], vcc
    ds_write_b128 v14, v[10:13] offset:4096
    s_mov_b64 exec, s[50:51]
    v_add_u32 v14, s34, v3
    v_cmp_gt_u32 vcc, 30, v1
    s_and_saveexec_b64 s[50:51], vcc
    ds_write_b128 v14, v[10:13] offset:{8*CPY}
    s_mov_b64 exec, s[50:51]
    ; A address
    v_and_b32 v14, 7, v4
    v_sub_u32 v14, 7, v14
    v_mul_u32_u24 v14, {CPY}, v14
    v_lshrrev_b32 v15, 3, v4
    v_sub_u32 v15, v5, v15               ; g - (m>>3)
    v_lshl_add_u32 v8, v15, 4, v14
    v_add_u32 v8, 16, v8
    v_add_u32 v8, s34, v8
    v_lshlrev_b32 v9, 5, v4
    v_lshl_add_u32 v9, v5, 4, v9
    v_add_u32 v9, {UOFF - 480}, v9
    v_add_u32 v9, s34, v9
    ''')
    a('s_waitcnt vmcnt(0)')
    stamp(a, 2)
    a('v_lshlrev_b32 v7, 16, v7')
    for sl in range(4):
        b = PRE + 8*sl
        a(f'v_lshlrev_b32 v10, 16, v{b}')
        a(f'v_and_b32 v11, 0xffff0000, v{b}')
        a(f'v_lshlrev_b32 v12, 16, v{b+1}')
        a(f'v_and_b32 v13, 0xffff0000, v{b+1}')
        a(f'v_pk_mul_f32 v[10:11], v[10:11], v[6:7] op_sel:[0,1] op_sel_hi:[1,1]')
        a(f'v_pk_mul_f32 v[12:13], v[12:13], v[6:7] op_sel:[0,1] op_sel_hi:[1,1]')
        a(f'v_cvt_pk_bf16_f32 v10, v10, v11')
        a(f'v_cvt_pk_bf16_f32 v12, v12, v13')
        a(f'v_lshlrev_b32 v{b}, 16, v10')
        a(f'v_and_b32 v{b+1}, 0xffff0000, v10')
        a(f'v_lshlrev_b32 v{b+2}, 16, v12')
        a(f'v_and_b32 v{b+3}, 0xffff0000, v12')
        a(f'v_and_b32 v{b+7}, 0xffff0000, v{b+5}')
        a(f'v_lshlrev_b32 v{b+6}, 16, v{b+5}')
        a(f'v_and_b32 v{b+5}, 0xffff0000, v{b+4}')
        a(f'v_lshlrev_b32 v{b+4}, 16, v{b+4}')
    a('s_waitcnt lgkmcnt(0)')
    a('s_barrier')
    stamp(a, 3)
    a('s_cmp_eq_u32 s32, 0')
    a('s_cbranch_scc0 K2_Q')
    mainloop(a, 'P')
    a('s_branch K2_EPI')
    a.label('K2_Q')
    mainloop(a, 'Q')
    a.label('K2_EPI')
    stamp(a, 4)
    for sl in range(4):
        c = ACC + 4*sl; b = PRE + 8*sl
        a(f'v_cvt_pk_bf16_f32 v10, v{c}, v{c+1}')
        a(f'v_cvt_pk_bf16_f32 v12, v{c+2}, v{c+3}')
        a(f'v_lshlrev_b32 v{c}, 16, v10')
        a(f'v_and_b32 v{c+1}, 0xffff0000, v10')
        a(f'v_lshlrev_b32 v{c+2}, 16, v12')
        a(f'v_and_b32 v{c+3}, 0xffff0000, v12')
        a(f'v_pk_add_f32 v[{c}:{c+1}], v[{c}:{c+1}], v[{b}:{b+1}]')
        a(f'v_pk_add_f32 v[{c+2}:{c+3}], v[{c+2}:{c+3}], v[{b+2}:{b+3}]')
        a(f'v_cvt_pk_bf16_f32 v10, v{c}, v{c+1}')
        a(f'v_cvt_pk_bf16_f32 v12, v{c+2}, v{c+3}')
        a(f'v_lshlrev_b32 v{c}, 16, v10')
        a(f'v_and_b32 v{c+1}, 0xffff0000, v10')
        a(f'v_lshlrev_b32 v{c+2}, 16, v12')
        a(f'v_and_b32 v{c+3}, 0xffff0000, v12')
        a(f'v_pk_add_f32 v[{c}:{c+1}], v[{c}:{c+1}], v[{b+4}:{b+5}]')
        a(f'v_pk_add_f32 v[{c+2}:{c+3}], v[{c+2}:{c+3}], v[{b+6}:{b+7}]')
        a(f'v_cvt_pk_bf16_f32 v{c}, v{c}, v{c+1}')
        a(f'v_cvt_pk_bf16_f32 v{c+1}, v{c+2}, v{c+3}')
        a(f'buffer_store_dwordx2 v[{c}:{c+1}], v6, s[20:23], s{44+sl} offen')
    if STAMPS: a('s_waitcnt vmcnt(0)')
    stamp(a, 5)
    stamp_end(a, 1, 5, 'k2')
    a.label('K2_END')
    a('s_endpgm')
    return kernel_text('k2_kernel', a, vgpr=224, sgpr=102)
```

```python
from common import *

K3_GRID = 256
K3_BLOCK = 512
GATE, UP, HOF = 0, 7184, 14352
STG = 22544
NST = 6
NCH = 14
CSL = 0
PART = 896
STATS = PART + 16384
SB = STATS + 1024
K3_LDS = SB + NST * STG
SET = [32, 76]
ACC = 128

def acc(j, u): return ACC + 4 * (4*j + u)

def compute_wave(a):
    a(f'''
    s_lshr_b32 s31, s30, 1               ; tw
    s_and_b32 s32, s30, 1                ; fw
    v_lshrrev_b32 v2, 4, v1              ; g
    v_bfe_u32 v3, v1, 2, 2               ; r
    v_and_b32 v4, 3, v1                  ; c
    v_lshl_add_u32 v5, v2, 2, v3         ; row = 4g + r
    v_mul_u32_u24 v6, 224, v5
    v_and_b32 v7, 1, v4
    v_lshl_add_u32 v6, v7, 3, v6
    v_lshrrev_b32 v7, 1, v4
    v_mul_u32_u24 v7, {UP}, v7
    v_add_u32 v6, v6, v7
    s_mul_i32 s33, s32, 112
    v_add_u32 v8, s33, v6
    v_add_u32 v8, {SB}, v8
    v_add_u32 v9, {2*STG}, v8
    v_add_u32 v10, {4*STG}, v8
    v_and_b32 v7, 7, v5                  ; row & 7
    v_lshlrev_b32 v6, 8, v5
    v_lshl_add_u32 v6, v4, 3, v6
    v_add_u32 v6, {SB + HOF}, v6
    s_lshl_b32 s34, s31, 2
    ''')
    for u in range(4):
        a(f's_add_u32 s35, s34, {u}')
        a(f'v_xor_b32 v11, s35, v7')
        a(f'v_lshl_add_u32 v{12+u}, v11, 5, v6')
        a(f'v_add_u32 v{16+u}, {2*STG}, v{12+u}')
        a(f'v_add_u32 v{20+u}, {4*STG}, v{12+u}')
    def reads(k):
        st = k % NST; pr = st >> 1; off = (st & 1) * STG
        S = SET[k & 1]
        out = []
        for u in range(4):
            r = S + 28 + 4*u
            for rho in range(2):
                out.append(f'ds_read_b64_tr_b16 v[{r+2*rho}:{r+2*rho+1}], v{12+4*pr+u} offset:{off + rho*4096}')
        for j in range(7):
            r = S + 4*j
            for rho in range(2):
                out.append(f'ds_read_b64_tr_b16 v[{r+2*rho}:{r+2*rho+1}], v{8+pr} offset:{off + rho*3584 + 16*j}')
        return out
    def mfmas(k):
        S = SET[k & 1]
        out = []
        for j in range(7):
            for u in range(4):
                c = acc(j, u)
                src = '0' if k == 0 else f'v[{c}:{c+3}]'
                out.append(f'v_mfma_f32_16x16x32_bf16 v[{c}:{c+3}], v[{S+4*j}:{S+4*j+3}], v[{S+28+4*u}:{S+28+4*u+3}], {src}')
        return out
    for it in range(NCH + 1):
        a('s_barrier')
        rd = reads(it) if it < NCH else []
        mf = mfmas(it - 1) if it >= 1 else []
        if not mf:
            for x in rd: a(x)
        else:
            for x in mf:
                a(x)
                if rd: a(rd.pop(0))
            for x in rd: a(x)
        a('s_waitcnt lgkmcnt(0)')
        if it == 0: stamp(a, 2)
    stamp(a, 3)
    a('s_barrier')
    a(f'''
    v_and_b32 v2, 15, v1                 ; n
    v_lshrrev_b32 v3, 5, v1              ; half
    v_bfe_u32 v4, v1, 4, 1               ; q
    s_lshl_b32 s36, s31, 9               ; 64*8*tw
    v_lshl_add_u32 v5, v3, 4, v2
    v_lshlrev_b32 v5, 3, v5
    v_add_u32 v5, s36, v5
    ds_read_b64 v[24:25], v5 offset:{STATS}
    ds_read_b64 v[26:27], v5 offset:{STATS + 256}
    s_mul_i32 s37, s32, 224
    v_lshlrev_b32 v6, 4, v4
    v_add_u32 v6, s37, v6
    ''')
    for j in range(7):
        a(f'ds_read_b128 v[{32+8*j}:{35+8*j}], v6 offset:{CSL + 32*j}')
        a(f'ds_read_b128 v[{36+8*j}:{39+8*j}], v6 offset:{CSL + 448 + 32*j}')
    a(f'''
    v_mul_u32_u24 v7, 57344, v3
    v_and_b32 v8, 31, v1
    v_lshl_add_u32 v7, v8, 4, v7         ; voffset
    s_lshl_b32 s38, s20, 3               ; 8 r
    s_add_u32 s38, s38, s34
    s_mul_i32 s38, s38, 57344
    s_lshl_b32 s39, s21, 1
    s_add_u32 s39, s39, s32
    s_mul_i32 s39, s39, 7                ; J0
    s_waitcnt lgkmcnt(0)
    ''')
    for pr in range(2):
        st = 24 + 2*pr
        for j in range(7):
            T1 = acc(j, 2*pr); T2 = acc(j, 2*pr + 1)
            for i in range(4):
                a(f'v_permlane32_swap_b32 v{T1+i}, v{T2+i}')
            cg = 32 + 8*j; cu = 36 + 8*j
            for hh in range(2):
                a(f'v_pk_fma_f32 v[{T1+2*hh}:{T1+2*hh+1}], v[{cg+2*hh}:{cg+2*hh+1}], v[{st}:{st+1}], v[{T1+2*hh}:{T1+2*hh+1}] op_sel:[0,0,0] op_sel_hi:[1,0,1] neg_lo:[0,1,0] neg_hi:[0,1,0]')
                a(f'v_pk_fma_f32 v[{T2+2*hh}:{T2+2*hh+1}], v[{cu+2*hh}:{cu+2*hh+1}], v[{st}:{st+1}], v[{T2+2*hh}:{T2+2*hh+1}] op_sel:[0,0,0] op_sel_hi:[1,0,1] neg_lo:[0,1,0] neg_hi:[0,1,0]')
            for hh in range(2):
                a(f'v_pk_mul_f32 v[{T1+2*hh}:{T1+2*hh+1}], v[{T1+2*hh}:{T1+2*hh+1}], v[{T2+2*hh}:{T2+2*hh+1}]')
            for hh in range(2):
                a(f'v_pk_mul_f32 v[{T1+2*hh}:{T1+2*hh+1}], v[{T1+2*hh}:{T1+2*hh+1}], v[{st}:{st+1}] op_sel:[0,1] op_sel_hi:[1,1]')
            a(f'v_cvt_pk_bf16_f32 v{T2}, v{T1}, v{T1+1}')
            a(f'v_cvt_pk_bf16_f32 v{T2+1}, v{T1+2}, v{T1+3}')
            a(f's_add_u32 s40, s39, {j}')
            a('s_lshr_b32 s41, s40, 1')
            a('s_lshl_b32 s41, s41, 9')
            a('s_and_b32 s40, s40, 1')
            a('s_lshl_b32 s40, s40, 3')
            a('s_add_u32 s40, s40, s41')
            a('s_add_u32 s40, s40, s38')
            if pr: a(f's_add_u32 s40, s40, {2*57344}')
            a(f'buffer_store_dwordx2 v[{T2}:{T2+1}], v7, s[16:19], s40 offen')

def loader_wave(a):
    a(f'''
    s_sub_u32 s31, s30, 4                ; lw
    ; W voffset: (l/14)*3584 + (l%14)*16
    v_mul_u32_u24 v2, 4682, v1           ; l/14 = (l*4682)>>16 for l<64
    v_lshrrev_b32 v2, 16, v2
    v_mul_u32_u24 v3, 14, v2
    v_sub_u32 v3, v1, v3
    v_mul_u32_u24 v4, 3584, v2
    v_lshl_add_u32 v4, v3, 4, v4         ; v4 = W voffset
    v_lshrrev_b32 v5, 4, v1              ; sub
    v_and_b32 v6, 15, v1                 ; c'
    v_lshlrev_b32 v7, 1, v5
    v_xor_b32 v8, v6, v7
    v_lshlrev_b32 v8, 4, v8
    v_lshl_add_u32 v8, v5, 12, v8        ; i=0
    v_xor_b32 v9, 128, v8                ; i=1: c ^ 8 -> byte ^ 128
    s_mul_i32 s32, s21, 224              ; c*224 bytes
    s_lshl_b32 s33, s31, 3               ; 8 lw
    s_mul_i32 s34, s33, 3584
    s_add_u32 s32, s32, s34
    s_lshl_b32 s35, s33, 12
    s_lshl_b32 s36, s20, 8               ; r*256
    s_add_u32 s35, s35, s36
    s_mul_i32 s37, s33, 224
    s_lshl_b32 s38, s33, 8
    s_mov_b32 s42, -1
    s_mov_b32 s43, 0x00ffffff
    ''')
    def issue(k):
        st = k % NST
        base = SB + st * STG
        a('s_mov_b64 exec, s[42:43]')
        for mat, (sr, reg) in enumerate(((4, GATE), (8, UP))):
            for i in range(2):
                a(f's_add_u32 m0, s37, {base + reg + i*896}')
                a(f's_add_u32 s39, s32, {(32*k + 4*i)*3584}')
                a(f'buffer_load_dwordx4 v4, s[{sr}:{sr+3}], s39 offen lds')
        a('s_mov_b64 exec, -1')
        for i in range(2):
            a(f's_add_u32 m0, s38, {base + HOF + i*1024}')
            a(f's_add_u32 s39, s35, {(32*k + 4*i)*4096}')
            a(f'buffer_load_dwordx4 v{8+i}, s[12:15], s39 offen lds')
    for k in range(NST): issue(k)
    a(f'''
    v_lshlrev_b32 v10, 8, v5             ; sub*256
    v_xor_b32 v11, v6, v7
    v_lshl_add_u32 v10, v11, 4, v10
    v_add_u32 v10, s38, v10
    v_add_u32 v10, {HOF}, v10
    v_lshlrev_b32 v11, 8, v5
    v_xor_b32 v12, v6, v7
    v_xor_b32 v12, 8, v12
    v_lshl_add_u32 v11, v12, 4, v11
    v_add_u32 v11, s38, v11
    v_add_u32 v11, {HOF + 1024}, v11
    ''')
    for i in range(16): a(f'v_mov_b32 v{32+i}, 0')
    issued = NST
    for k in range(NCH):
        allowed = (issued - 1 - k) * 6
        a(f's_waitcnt vmcnt({allowed})')
        a('s_barrier')
        if k >= 1 and k - 1 + NST < NCH:
            issue(k - 1 + NST); issued += 1
        st = k % NST
        sb = SB + st * STG
        a(f'v_add_u32 v13, {sb}, v10')
        a(f'v_add_u32 v14, {sb}, v11')
        a('ds_read_b128 v[16:19], v13')
        a('ds_read_b128 v[20:23], v14')
        for i in range(2):
            a(f's_waitcnt lgkmcnt({1-i})')
            b = 16 + 4*i
            for e in range(4):
                a(f'v_lshlrev_b32 v{24+2*e}, 16, v{b+e}')
                a(f'v_and_b32 v{25+2*e}, 0xffff0000, v{b+e}')
            for e in range(4):
                a(f'v_pk_add_f32 v[{32+2*e}:{33+2*e}], v[{32+2*e}:{33+2*e}], v[{24+2*e}:{25+2*e}]')
                a(f'v_pk_fma_f32 v[{40+2*e}:{41+2*e}], v[{24+2*e}:{25+2*e}], v[{24+2*e}:{25+2*e}], v[{40+2*e}:{41+2*e}]')
    a(f'''
    s_lshl_b32 s40, s31, 11              ; lw*4*512
    v_lshlrev_b32 v13, 9, v5
    v_lshl_add_u32 v13, v6, 5, v13       ; + cL*8 t *4 B
    v_add_u32 v13, s40, v13
    ds_write_b128 v13, v[32:35] offset:{PART}
    ds_write_b128 v13, v[36:39] offset:{PART + 16}
    ds_write_b128 v13, v[40:43] offset:{PART + 8192}
    ds_write_b128 v13, v[44:47] offset:{PART + 8192 + 16}
    ''')
    a('s_cmp_lg_u32 s31, 0')
    a('s_cbranch_scc1 K3_NOCS')
    a(f'''
    v_cmp_gt_u32 vcc, 28, v1
    v_lshlrev_b32 v14, 4, v1
    v_subrev_u32 v15, {28*16}, v14
    v_add_u32 v15, {F*4}, v15            ; up: F*4 + (l-28)*16
    v_cndmask_b32 v15, v15, v14, vcc
    s_mul_i32 s41, s21, 448              ; c*112*4
    s_mov_b64 exec, s[42:43]
    buffer_load_dwordx4 v[16:19], v15, s[24:27], s41 offen
    s_waitcnt vmcnt(0)
    ds_write_b128 v14, v[16:19] offset:{CSL}
    s_mov_b64 exec, -1
    ''')
    a.label('K3_NOCS')
    a('s_waitcnt lgkmcnt(0)')
    a('s_barrier')
    a('s_cmp_gt_u32 s31, 1')
    a('s_cbranch_scc1 K3_LD_WAIT')
    a(f'''
    s_lshl_b32 s40, s31, 8
    v_lshlrev_b32 v13, 2, v1
    v_add_u32 v13, s40, v13
    ''')
    for p in range(16):
        a(f'ds_read_b32 v{16+p}, v13 offset:{PART + p*512}') if p < 8 else None
    a('s_waitcnt lgkmcnt(0)')
    for p in range(1, 8): a(f'v_add_f32 v16, v16, v{16+p}')
    for p in range(8, 16): a(f'ds_read_b32 v{16+p}, v13 offset:{PART + p*512}')
    a('s_waitcnt lgkmcnt(0)')
    for p in range(8, 16): a(f'v_add_f32 v16, v16, v{16+p}')
    for p in range(8): a(f'ds_read_b32 v{32+p}, v13 offset:{PART + 8192 + p*512}')
    a('s_waitcnt lgkmcnt(0)')
    for p in range(1, 8): a(f'v_add_f32 v32, v32, v{32+p}')
    for p in range(8, 16): a(f'ds_read_b32 v{32+p}, v13 offset:{PART + 8192 + p*512}')
    a('s_waitcnt lgkmcnt(0)')
    for p in range(8, 16): a(f'v_add_f32 v32, v32, v{32+p}')
    a(f'''
    v_mul_f32 v16, {fhex(1.0/448)}, v16          ; mean
    v_mul_f32 v32, {fhex(1.0/448)}, v32          ; E[x^2]
    v_fma_f32 v32, -v16, v16, v32                ; var
    v_max_f32 v32, 0, v32
    v_cvt_pk_bf16_f32 v17, v16, v32
    v_lshlrev_b32 v16, 16, v17                   ; mean_bf
    v_and_b32 v32, 0xffff0000, v17
    v_add_f32 v32, {fhex(1e-5)}, v32
    v_cvt_pk_bf16_f32 v32, v32, v32
    v_and_b32 v32, 0xffff0000, v32
    v_sqrt_f32 v32, v32
    v_cvt_pk_bf16_f32 v32, v32, v32
    v_and_b32 v32, 0xffff0000, v32
    v_rcp_f32 v32, v32
    v_mul_f32 v17, v32, v32                      ; r^2
    v_lshlrev_b32 v13, 1, v13                    ; t*8
    ds_write_b64 v13, v[16:17] offset:{STATS}
    s_waitcnt lgkmcnt(0)
    ''')
    a.label('K3_LD_WAIT')
    a('s_barrier')

def gen_k3():
    a = Asm()
    stamp_begin(a)
    a(f'''
    s_cmp_ge_u32 s2, {K3_GRID}
    s_cbranch_scc1 K3_END
    s_load_dwordx4 s[44:47], s[0:1], {KA['wg']}
    s_load_dwordx2 s[48:49], s[0:1], {KA['ws']}
    v_and_b32 v1, 63, v0
    v_lshrrev_b32 v2, 6, v0
    v_readfirstlane_b32 s30, v2
    s_and_b32 s22, s2, 7                 ; xcd
    s_lshr_b32 s23, s2, 3                ; j
    s_lshr_b32 s20, s22, 2
    s_lshl_b32 s20, s20, 3
    s_lshr_b32 s24, s23, 2
    s_add_u32 s20, s20, s24              ; r
    s_and_b32 s21, s22, 3
    s_lshl_b32 s21, s21, 2
    s_and_b32 s24, s23, 3
    s_add_u32 s21, s21, s24              ; c
    s_waitcnt lgkmcnt(0)
    ''')
    stamp(a, 1)
    srd(a, 4, 44, 45, D*F*2)
    srd(a, 8, 46, 47, D*F*2)
    srd(a, 12, 48, 49, ACT_BYTES, HT_OFF)
    srd(a, 16, 48, 49, HID_BYTES, HID_OFF)
    srd(a, 24, 48, 49, 2*F*4, CS_OFF)
    a('s_cmp_ge_u32 s30, 4')
    a('s_cbranch_scc1 K3_LOADER')
    compute_wave(a)
    if STAMPS: a('s_waitcnt vmcnt(0)')
    stamp(a, 4)
    stamp_end(a, 2, 4, 'k3')
    a('s_endpgm')
    a.label('K3_LOADER')
    loader_wave(a)
    a.label('K3_END')
    a('s_endpgm')
    return kernel_text('k3_kernel', a, vgpr=240, sgpr=102)
```

```python
from common import *

K4_GRID = 224
K4_BLOCK = 256
RD = 7
HTL = 0
RING = 8192
K4_LDS = RING + 4 * RD * 4096
ACC = 16
AF = 80
BF = 96

def acc(a_, u): return ACC + 4 * (4*a_ + u)

def gen_k4():
    a = Asm()
    stamp_begin(a)
    a(f'''
    s_cmp_ge_u32 s2, {K4_GRID}
    s_cbranch_scc1 K4_END
    s_load_dwordx4 s[44:47], s[0:1], {KA['wd']}
    s_load_dwordx2 s[48:49], s[0:1], {KA['ws']}
    v_and_b32 v1, 63, v0
    v_lshrrev_b32 v2, 6, v0
    v_readfirstlane_b32 s30, v2          ; wave
    s_and_b32 s22, s2, 7
    s_lshr_b32 s23, s2, 3
    s_lshl_b32 s20, s22, 2
    s_and_b32 s24, s23, 3
    s_add_u32 s20, s20, s24
    s_lshr_b32 s21, s23, 2
    s_waitcnt lgkmcnt(0)
    ''')
    stamp(a, 1)
    srd(a, 4, 44, 45, F*D*2)
    srd(a, 8, 46, 47, ACT_BYTES)
    srd(a, 12, 48, 49, ACT_BYTES, HT_OFF)
    srd(a, 16, 48, 49, HID_BYTES, HID_OFF)
    a(f'''
    v_lshrrev_b32 v3, 3, v1              ; sub
    v_and_b32 v4, 7, v1
    v_bfe_u32 v5, v1, 4, 2               ; (sub>>1)&3
    v_lshlrev_b32 v5, 1, v5
    v_xor_b32 v4, v4, v5
    v_mul_u32_u24 v6, 896, v3
    v_lshl_add_u32 v6, v4, 4, v6
    v_lshlrev_b32 v7, 4, v1
    s_mul_i32 s31, s30, {14*32*896}
    s_lshl_b32 s32, s21, 7               ; ct*128 B
    s_add_u32 s31, s31, s32
    s_lshl_b32 s33, s20, 2
    s_mul_i32 s33, s33, 57344
    s_mul_i32 s34, s30, {14*1024}
    s_add_u32 s33, s33, s34
    s_mul_i32 s35, s30, {RD*4096}
    s_add_u32 s35, s35, {RING}
    ''')
    def issue(i):
        sl = i % RD
        for k in range(4):
            a(f's_add_u32 m0, s35, {sl*4096 + k*1024}')
            a(f's_add_u32 s36, s31, {(32*i + 8*k)*896}')
            a(f'buffer_load_dwordx4 v6, s[4:7], s36 offen lds')
        for u in range(4):
            a(f's_add_u32 s36, s33, {u*57344 + i*1024}')
            r = BF + 16*sl + 4*u
            a(f'buffer_load_dwordx4 v[{r}:{r+3}], v7, s[16:19], s36 offen')
    a(f'''
    v_lshlrev_b32 v8, 12, v3             ; sub*4096
    v_and_b32 v9, 7, v1
    v_lshl_add_u32 v8, v9, 4, v8
    s_lshl_b32 s37, s21, 6               ; d0
    s_lshl_b32 s38, s30, 4
    s_add_u32 s37, s37, s38              ; d row
    s_lshl_b32 s37, s37, 12
    s_lshl_b32 s38, s20, 7               ; rt*64*2
    s_add_u32 s37, s37, s38
    s_lshl_b32 s39, s30, 11              ; LDS: 16w*128
    s_add_u32 m0, s39, {HTL}
    s_nop 0
    buffer_load_dwordx4 v8, s[12:15], s37 offen lds
    s_add_u32 m0, s39, {HTL + 1024}
    s_add_u32 s37, s37, {8*4096}
    buffer_load_dwordx4 v8, s[12:15], s37 offen lds
    ''')
    for i in range(RD): issue(i)
    a(f'''
    v_lshrrev_b32 v2, 4, v1              ; g
    v_bfe_u32 v3, v1, 2, 2               ; r
    v_and_b32 v4, 3, v1                  ; c
    v_lshrrev_b32 v5, 1, v2
    v_lshlrev_b32 v5, 4, v5
    v_and_b32 v8, 1, v2
    v_lshl_add_u32 v5, v8, 2, v5
    v_add_u32 v5, v5, v3
    v_bfe_u32 v9, v5, 1, 2               ; (row>>1)&3
    v_lshlrev_b32 v5, 7, v5
    v_lshl_add_u32 v5, v4, 3, v5
    v_add_u32 v5, s35, v5
    ''')
    for a_ in range(4):
        a(f'v_xor_b32 v8, {a_}, v9')
        a(f'v_lshl_add_u32 v{10+a_}, v8, 5, v5')
    issued = RD
    for i in range(14):
        a(f's_waitcnt vmcnt({8*(issued - 1 - i)})')
        if i == 0: stamp(a, 2)
        sl = i % RD
        for a_ in range(4):
            for rho in range(2):
                r = AF + 4*a_ + 2*rho
                a(f'ds_read_b64_tr_b16 v[{r}:{r+1}], v{10+a_} offset:{sl*4096 + rho*1024}')
        for a_ in range(4):
            a(f's_waitcnt lgkmcnt({6 - 2*a_})')
            for u in range(4):
                c = acc(a_, u)
                b = BF + 16*sl + 4*u
                src = '0' if i == 0 else f'v[{c}:{c+3}]'
                a(f'v_mfma_f32_16x16x32_bf16 v[{c}:{c+3}], v[{AF+4*a_}:{AF+4*a_+3}], v[{b}:{b+3}], {src}')
        if i + RD < 14:
            issue(i + RD); issued += 1
    stamp(a, 3)
    a('s_barrier')
    a(f'''
    s_lshl_b32 s36, s30, 14
    v_add_u32 v8, s36, v7
    v_add_u32 v8, {RING}, v8
    ''')
    for u in range(4):
        a(f's_cmp_eq_u32 s30, {u}')
        a(f's_cbranch_scc1 K4_W{u}')
        for a_ in range(4):
            c = acc(a_, u)
            a(f'ds_write_b128 v8, v[{c}:{c+3}] offset:{(u*4 + a_)*1024}')
        a.label(f'K4_W{u}')
    a('s_waitcnt lgkmcnt(0)')
    a('s_barrier')
    for u in range(4):
        a(f's_cmp_lg_u32 s30, {u}')
        a(f's_cbranch_scc1 K4_M{u}')
        for a_ in range(4):
            c = acc(a_, u)
            for i in range(4):
                a(f'v_mov_b32 v{96+4*a_+i}, v{c+i}')
        a.label(f'K4_M{u}')
    a(f'''
    s_lshl_b32 s37, s30, 12              ; u*4 KB
    v_add_u32 v8, s37, v7
    v_add_u32 v8, {RING}, v8
    ''')
    for k in range(1, 4):
        a(f's_add_u32 s36, s30, {k}')
        a('s_and_b32 s36, s36, 3')
        a('s_lshl_b32 s36, s36, 14')
        a(f'v_add_u32 v9, s36, v8')
        for a_ in range(4):
            r = 112 + 16*(k-1) + 4*a_
            a(f'ds_read_b128 v[{r}:{r+3}], v9 offset:{a_*1024}')
    a(f'''
    v_lshl_add_u32 v5, v2, 2, v3         ; 4q + r
    v_lshlrev_b32 v5, 7, v5
    v_lshl_add_u32 v5, v4, 3, v5
    s_lshl_b32 s36, s30, 5
    v_add_u32 v5, s36, v5
    ''')
    for a_ in range(4):
        a(f'ds_read_b64_tr_b16 v[{160+2*a_}:{161+2*a_}], v5 offset:{HTL + a_*2048}')
    a(f'''
    v_and_b32 v8, 15, v1
    v_mul_u32_u24 v8, 896, v8
    v_lshl_add_u32 v8, v2, 3, v8
    s_lshl_b32 s36, s20, 6
    s_lshl_b32 s37, s30, 4
    s_add_u32 s36, s36, s37
    s_mul_i32 s36, s36, 896
    s_lshl_b32 s37, s21, 7
    s_add_u32 s36, s36, s37
    s_waitcnt lgkmcnt(0)
    ''')
    for a_ in range(4):
        c = 96 + 4*a_
        for k in range(3):
            r = 112 + 16*k + 4*a_
            a(f'v_pk_add_f32 v[{c}:{c+1}], v[{c}:{c+1}], v[{r}:{r+1}]')
            a(f'v_pk_add_f32 v[{c+2}:{c+3}], v[{c+2}:{c+3}], v[{r+2}:{r+3}]')
        a(f'v_cvt_pk_bf16_f32 v{c}, v{c}, v{c+1}')
        a(f'v_cvt_pk_bf16_f32 v{c+2}, v{c+2}, v{c+3}')
        a(f'v_and_b32 v{c+1}, 0xffff0000, v{c}')
        a(f'v_lshlrev_b32 v{c}, 16, v{c}')
        a(f'v_and_b32 v{c+3}, 0xffff0000, v{c+2}')
        a(f'v_lshlrev_b32 v{c+2}, 16, v{c+2}')
        h = 160 + 2*a_
        a(f'v_lshlrev_b32 v170, 16, v{h}')
        a(f'v_and_b32 v171, 0xffff0000, v{h}')
        a(f'v_lshlrev_b32 v172, 16, v{h+1}')
        a(f'v_and_b32 v173, 0xffff0000, v{h+1}')
        a(f'v_pk_add_f32 v[{c}:{c+1}], v[{c}:{c+1}], v[170:171]')
        a(f'v_pk_add_f32 v[{c+2}:{c+3}], v[{c+2}:{c+3}], v[172:173]')
        a(f'v_cvt_pk_bf16_f32 v{c}, v{c}, v{c+1}')
        a(f'v_cvt_pk_bf16_f32 v{c+1}, v{c+2}, v{c+3}')
        a(f'buffer_store_dwordx2 v[{c}:{c+1}], v8, s[8:11], s36 offen offset:{32*a_}')
    if STAMPS: a('s_waitcnt vmcnt(0)')
    stamp(a, 4)
    stamp_end(a, 3, 4, 'k4')
    a.label('K4_END')
    a('s_endpgm')
    return kernel_text('k4_kernel', a, vgpr=208, sgpr=102)
```

```python
import sys
sys.path.insert(0, 'gen')
from common import *
import k1

HEADER = open('sequential_preLN__ssm_conv_s4__glu_gated_bilinear__prompt.s.ref').read().split('; Override launch')[0]

def build(kernels, path):
    out = HEADER
    for name, grid, block, lds, _ in kernels:
        out += f'; @launch kernel={name} grid=({grid},1,1) block=({block},1,1) lds={lds}\n'
    out += '.amdgcn_target "amdgcn-amd-amdhsa--gfx950"\n'
    seen = set()
    for name, grid, block, lds, text in kernels:
        if name in seen: continue
        seen.add(name)
        out += text
    out += '.text\nALL_CODE_END:\ns_endpgm\n'
    open(path, 'w').write(out)

if __name__ == '__main__':
    which = sys.argv[1] if len(sys.argv) > 1 else 'all'
    ks = [('k1_kernel', k1.K1_GRID, 256, k1.K1_LDS, k1.gen_k1())]
    try:
        import k2
        ks.append(('k2_kernel', k2.K2_GRID, k2.K2_BLOCK, k2.K2_LDS, k2.gen_k2()))
        import k3
        ks.append(('k3_kernel', k3.K3_GRID, k3.K3_BLOCK, k3.K3_LDS, k3.gen_k3()))
        import k4
        ks.append(('k4_kernel', k4.K4_GRID, k4.K4_BLOCK, k4.K4_LDS, k4.gen_k4()))
    except ImportError as e:
        print('partial build:', e)
    path = sys.argv[2] if len(sys.argv) > 2 else 'cur.s'
    build(ks, path)
    print('wrote', path)
```

```python
import re

REG_RE = re.compile(r'(?<![\w.])([vas])(?:(\d+)|\[(\d+):(\d+)\])(?![\w])')

TRANS = ('v_exp_f32', 'v_log_f32', 'v_rcp_f32', 'v_rsq_f32', 'v_sqrt_f32', 'v_sin_f32', 'v_cos_f32',
         'v_rcp_iflag_f32', 'v_exp_f16', 'v_log_f16', 'v_rcp_f16', 'v_rsq_f16', 'v_sqrt_f16')


def regs_of(tok):
    out = set()
    t = tok.strip()
    for m in REG_RE.finditer(t):
        k = m.group(1)
        if m.group(2) is not None:
            out.add((k, int(m.group(2))))
        else:
            for i in range(int(m.group(3)), int(m.group(4)) + 1):
                out.add((k, i))
    if re.search(r'(?<![\w])vcc(?![\w])', t):
        out.add(('vcc', 0))
    if re.search(r'(?<![\w])vcc_lo|vcc_hi(?![\w])', t):
        out.add(('vcc', 0))
    if re.search(r'(?<![\w])exec(?![\w])', t):
        out.add(('exec', 0))
    if re.search(r'(?<![\w])m0(?![\w])', t):
        out.add(('m0', 0))
    return out


def split_ops(s):
    out, depth, cur = [], 0, ''
    for ch in s:
        if ch in '[(':
            depth += 1
        elif ch in '])':
            depth -= 1
        if ch == ',' and depth == 0:
            out.append(cur.strip())
            cur = ''
        else:
            cur += ch
    if cur.strip():
        out.append(cur.strip())
    return out


class Ins:
    __slots__ = ('text', 'op', 'kind', 'w', 'r', 'mf', 'label', 'target', 'ws', 'dpp', 'raw', 'srcc', 'srcab', 'dstregs')

    def __init__(self, text):
        self.text = text
        self.label = None
        self.target = None
        self.w = set()
        self.r = set()
        self.mf = 0
        self.ws = 1
        self.dpp = False
        self.srcc = set()
        self.srcab = set()
        self.kind = 'other'
        body = text.split(';')[0].strip()
        body = body.split('//')[0].strip()
        self.op = ''
        if not body:
            self.kind = 'none'
            self.ws = 0
            return
        if body.endswith(':') and ' ' not in body:
            self.kind = 'label'
            self.label = body[:-1]
            self.ws = 0
            return
        if body.startswith('.'):
            self.kind = 'dir'
            self.ws = 0
            return
        parts = body.split(None, 1)
        op = parts[0]
        self.op = op
        rest = parts[1] if len(parts) > 1 else ''
        ops = split_ops(rest)
        mods = ''
        if ops:
            last = ops[-1]
            depth = 0
            cut = None
            for i, ch in enumerate(last):
                if ch in '[(':
                    depth += 1
                elif ch in '])':
                    depth -= 1
                elif ch in ' \t' and depth == 0:
                    cut = i
                    break
            if cut is not None:
                mods = last[cut:]
                ops[-1] = last[:cut]
        base = re.sub(r'_(e32|e64|dpp|sdwa)$', '', op)
        R = [regs_of(o) for o in ops]
        if op == 's_nop':
            self.kind = 'nop'
            self.ws = int(ops[0], 0) + 1
        elif op.startswith('s_cbranch') or op == 's_branch':
            self.kind = 'branch'
            self.target = ops[0]
            if 'vcc' in op:
                self.r.add(('vcc', 0))
            if 'exec' in op:
                self.r.add(('exec', 0))
        elif op == 's_endpgm':
            self.kind = 'end'
        elif op.startswith('v_mfma'):
            self.kind = 'mfma'
            if '32x32x16' in op or '32x32x8' in op or 'i32_32x32x32' in op:
                self.mf = 8
            elif '16x16x32' in op or '16x16x16' in op or '16x16x64' in op:
                self.mf = 4
            elif '32x32x2_f32' in op:
                self.mf = 16
            elif '16x16x4_f32' in op:
                self.mf = 8
            else:
                raise ValueError('unknown mfma ' + op)
            self.w = R[0]
            self.srcab = R[1] | R[2]
            self.srcc = R[3]
            self.r = self.srcab | self.srcc
        elif op.startswith('v_'):
            self.kind = 'valu'
            if base in TRANS:
                self.kind = 'trans'
            if base.startswith('v_dot2'):
                self.kind = 'dot'
            if op.endswith('_dpp') or 'row_' in mods or 'quad_perm' in mods or 'wave_' in mods:
                self.dpp = True
            if base.startswith('v_cmpx'):
                self.w = R[0] | {('exec', 0)}
                for x in R[1:]:
                    self.r |= x
            elif base.startswith('v_cmp'):
                self.w = R[0]
                for x in R[1:]:
                    self.r |= x
            elif base in ('v_readfirstlane_b32', 'v_readlane_b32'):
                self.kind = 'readlane'
                self.w = R[0]
                for x in R[1:]:
                    self.r |= x
            elif base in ('v_permlane32_swap_b32', 'v_permlane16_swap_b32'):
                self.kind = 'permlane'
                self.w = R[0] | R[1]
                self.r = R[0] | R[1]
            elif base in ('v_add_co_u32', 'v_sub_co_u32', 'v_subrev_co_u32', 'v_addc_co_u32', 'v_subb_co_u32',
                          'v_div_scale_f32', 'v_mad_u64_u32'):
                self.w = R[0] | R[1]
                for x in R[2:]:
                    self.r |= x
            else:
                self.w = R[0]
                for x in R[1:]:
                    self.r |= x
                if base.startswith('v_dot2'):
                    self.srcab = R[1] | R[2]
                if base in ('v_fmac_f32', 'v_dot2c_f32_bf16', 'v_pk_fmac_f16', 'v_writelane_b32', 'v_mac_f32') or self.dpp:
                    self.r |= R[0]
                if base == 'v_cndmask_b32' and len(ops) == 3:
                    self.r.add(('vcc', 0))
            self.r.add(('exec_impl', 0))
        elif op.startswith('buffer_') or op.startswith('global_') or op.startswith('flat_') or op.startswith('scratch_'):
            self.kind = 'vmem'
            is_lds = bool(re.search(r'\blds\b', mods)) or 'load_lds' in op
            if 'store' in op or 'atomic' in op or 'wbl2' in op or '_inv' in op:
                for x in R:
                    self.r |= x
                if 'atomic' in op and 'sc0' in mods and op.startswith('buffer'):
                    self.w = R[0]
                if 'atomic' in op and 'sc0' in mods and op.startswith('global'):
                    self.w = R[0]
                if 'store' in op and ('x4' in op or 'x3' in op):
                    self.kind = 'vmem_wstore'
                    self.srcc = R[1] if op.startswith('global') else R[0]
            elif is_lds:
                for x in R:
                    self.r |= x
                self.r.add(('m0', 0))
                self.kind = 'vmem_lds'
            else:
                self.w = R[0]
                for x in R[1:]:
                    self.r |= x
        elif op.startswith('ds_'):
            self.kind = 'ds'
            if 'write' in op or op.startswith('ds_add') or op.startswith('ds_max') or op.startswith('ds_min'):
                for x in R:
                    self.r |= x
            else:
                self.w = R[0]
                for x in R[1:]:
                    self.r |= x
        elif op.startswith('s_load') or op.startswith('s_buffer_load') or op in ('s_memtime', 's_memrealtime'):
            self.kind = 'smem'
            self.w = R[0]
            for x in R[1:]:
                self.r |= x
        elif op.startswith('s_'):
            self.kind = 'salu'
            if op.startswith('s_cmp') or op in ('s_waitcnt', 's_barrier', 's_setprio', 's_sleep', 's_sendmsg', 's_bitcmp1_b32', 's_bitcmp0_b32'):
                for x in R:
                    self.r |= x
            else:
                if R:
                    self.w = R[0]
                for x in R[1:]:
                    self.r |= x
                if 'saveexec' in op:
                    self.w = self.w | {('exec', 0)}
        else:
            raise ValueError('cannot classify: ' + text)


def _isv(regs):
    return {x for x in regs if x[0] in ('v', 'a')}


def _iss(regs):
    return {x for x in regs if x[0] in ('s', 'vcc')}


MF_RAW = {2: 5, 4: 8, 8: 12, 16: 20}
MF_CPART = {2: 4, 4: 6, 8: 10, 16: 18}
MF_WAR = {2: 1, 4: 3, 8: 7, 16: 15}


def need(p, c):
    n = 0
    pv = p.kind in ('valu', 'trans', 'readlane', 'permlane', 'dot')
    cv = c.kind in ('valu', 'trans', 'readlane', 'permlane', 'dot')
    if p.kind == 'dot':
        wv = _isv(p.w)
        if c.kind == 'dot' and c.op == p.op:
            if wv & c.srcab:
                n = max(n, 3)
        elif wv & (c.r | c.w):
            n = max(n, 3)
    if pv:
        wv = _isv(p.w)
        if c.kind == 'mfma' and (wv & c.r):
            n = max(n, 2)
        if p.kind == 'trans' and cv and c.kind != 'trans' and (wv & (c.r | c.w)):
            n = max(n, 1)
        if p.kind == 'trans' and (c.kind in ('vmem', 'vmem_wstore', 'ds', 'vmem_lds')) and (wv & c.r):
            n = max(n, 1)
        if c.kind == 'readlane' and (wv & c.r):
            n = max(n, 1)
        if c.kind == 'permlane' and (wv & c.r):
            n = max(n, 2)
        if cv and c.dpp and (wv & c.r):
            n = max(n, 2)
        ws = _iss(p.w)
        if ws:
            if cv and (ws & c.r):
                n = max(n, 4 if c.kind == 'readlane' or c.op.startswith('v_writelane') else 2)
            if c.kind.startswith('vmem') and (ws & c.r):
                n = max(n, 5)
            if c.kind in ('salu', 'branch', 'smem') and (ws & c.r):
                n = max(n, 2)
        if ('exec', 0) in p.w:
            if cv and c.dpp:
                n = max(n, 5)
            if c.kind in ('readlane', 'permlane', 'mfma'):
                n = max(n, 4)
    if p.kind == 'mfma':
        d = p.w
        if c.kind == 'mfma':
            if d & c.srcab:
                n = max(n, MF_RAW[p.mf])
            if d & c.srcc:
                if c.srcc == d and c.mf == p.mf:
                    n = max(n, 2 if p.mf == 2 else 0)
                else:
                    n = max(n, MF_CPART[p.mf])
            elif d & c.w:
                n = max(n, MF_RAW[p.mf])
        elif c.kind not in ('salu', 'nop', 'branch', 'smem', 'other', 'end'):
            if d & (c.r | c.w):
                n = max(n, MF_RAW[p.mf])
        if cv and (p.srcc & c.w):
            n = max(n, MF_WAR[p.mf])
    if p.kind == 'vmem_wstore':
        if (p.srcc & c.w):
            n = max(n, 2)
    if p.kind == 'salu' and ('m0', 0) in p.w and c.kind == 'vmem_lds':
        n = max(n, 1)
    return n


MAXWS = 21


class Asm:
    def __init__(self):
        self.lines = []

    def __call__(self, s, *a):
        for ln in s.split('\n'):
            ln = ln.strip()
            if ln:
                self.lines.append(ln)

    def comment(self, s):
        self.lines.append('; ' + s)

    def label(self, l):
        self.lines.append(l + ':')

    def text(self):
        return '\n'.join(self.lines) + '\n'


def fix_hazards(lines, verbose=False):
    ins = [Ins(l) for l in lines]
    n = len(ins)
    labels = {x.label: i for i, x in enumerate(ins) if x.kind == 'label'}
    br = {}
    for i, x in enumerate(ins):
        if x.kind == 'branch':
            if x.target not in labels:
                raise ValueError('unknown label ' + x.target)
            br.setdefault(labels[x.target], []).append(i)
    pre = [0] * n

    def preds(i):
        out = []
        if i > 0 and not (ins[i - 1].op == 's_branch' or ins[i - 1].kind == 'end'):
            out.append(i - 1)
        if ins[i].kind == 'label':
            out += br.get(i, [])
        return out
    total = 0
    for i, c in enumerate(ins):
        if c.ws == 0 or c.kind == 'nop':
            continue
        worst = 0
        why = None
        stack = [(j, 0) for j in preds(i)]
        seen = {}
        while stack:
            j, dist = stack.pop()
            if dist >= MAXWS or seen.get(j, 99) <= dist:
                continue
            seen[j] = dist
            p = ins[j]
            if p.ws:
                nd = need(p, c)
                if nd - dist > worst:
                    worst = nd - dist
                    why = p
            nd2 = dist + p.ws + pre[j]
            for q in preds(j):
                stack.append((q, nd2))
        if worst > 0:
            pre[i] = worst
            total += worst
            if verbose:
                print('hazard +%d: %s  <-  %s' % (worst, c.text, why.text))
    out = []
    for i, x in enumerate(ins):
        k = pre[i]
        while k > 0:
            t = min(k, 16)
            out.append('s_nop %d' % (t - 1))
            k -= t
        out.append(x.text)
    return out, total
```

```python
import struct
from asmlib import *

def fhex(x):
    return '0x%08x' % struct.unpack('<I', struct.pack('<f', x))[0]

L = 2048; D = 448; N = 256; F = 1792
KA = dict(x=0, a_re=8, a_im=16, b_re=24, b_im=32, c_re=40, c_im=48, log_dt=56, dskip=64, bx=72,
          wg=80, wu=88, wd=96, out=104, dbg=112, ws=120)
UT_OFF = 0x000000
XT_OFF = 0x200000
HT_OFF = 0x400000
KR_OFF = 0x600000
KR_VER = 4160
KR_STRIDE = 2 * KR_VER
CS_OFF = 0xA00000
HID_OFF = 0xB00000
ACT_BYTES = L * D * 2
HID_BYTES = L * F * 2

def srd(a, s, lo, hi, nbytes, add=0):
    if add:
        a(f's_add_u32 s{s}, s{lo}, {add}')
        a(f's_addc_u32 s{s+1}, s{hi}, 0')
    else:
        a(f's_mov_b32 s{s}, s{lo}')
        a(f's_mov_b32 s{s+1}, s{hi}')
    a(f's_mov_b32 s{s+2}, {nbytes}')
    a(f's_mov_b32 s{s+3}, 0x20000')

def kernel_text(name, body, vgpr, sgpr=96, accum=None, agpr=0):
    lines, n = fix_hazards(body.lines)
    acc = accum if accum is not None else ((vgpr + 3) // 4) * 4
    nfv = acc + agpr if agpr else vgpr
    hdr = f'''.text
.globl {name}
.p2align 8
.type {name},@function
{name}:
'''
    tail = f'''
.section .rodata,"a"
.p2align 6
.amdhsa_kernel {name}
  .amdhsa_next_free_vgpr {nfv}
  .amdhsa_next_free_sgpr {sgpr}
  .amdhsa_accum_offset {acc}
  .amdhsa_group_segment_fixed_size 0
  .amdhsa_kernarg_size 128
  .amdhsa_user_sgpr_count 2
  .amdhsa_user_sgpr_kernarg_segment_ptr 1
  .amdhsa_system_sgpr_workgroup_id_x 1
.end_amdhsa_kernel
'''
    return hdr + '\n'.join(lines) + '\n' + tail

def cmul(a, c, x, y, t):
    a(f'v_pk_mul_f32 v[{t}:{t+1}], v[{x}:{x+1}], v[{y}:{y+1}] op_sel:[0,0] op_sel_hi:[1,0]')
    a(f'v_pk_fma_f32 v[{c}:{c+1}], v[{x}:{x+1}], v[{y}:{y+1}], v[{t}:{t+1}] op_sel:[1,1,0] op_sel_hi:[0,1,1] neg_lo:[1,0,0]')

import os
STAMPS = os.environ.get('STAMPS', '0') == '1'
STAMP_OFF = 0x3000000
STAMP_S0 = 76
def stamp_begin(a):
    if not STAMPS: return
    a(f's_memrealtime s[{STAMP_S0}:{STAMP_S0+1}]')
    a(f's_memtime s[{STAMP_S0+2}:{STAMP_S0+3}]')
def stamp(a, i):
    if not STAMPS: return
    a(f's_memtime s[{STAMP_S0+2+2*i}:{STAMP_S0+3+2*i}]')
def stamp_end(a, kidx, n, tag, tid=0):
    if not STAMPS: return
    a(f's_memrealtime s[{STAMP_S0+2+2*(n+1)}:{STAMP_S0+3+2*(n+1)}]')
    a(f's_load_dwordx2 s[4:5], s[0:1], {KA["ws"]}')
    a('s_waitcnt lgkmcnt(0)')
    srd(a, 8, 4, 5, 1 << 20, STAMP_OFF + kidx * (1 << 17))
    a('s_mov_b64 exec, -1')
    a(f'v_mov_b32 v1, {tid}')
    a('v_cmp_eq_u32 vcc, v1, v0')
    a('s_and_saveexec_b64 s[4:5], vcc')
    a(f's_cbranch_execz STAMP_DONE_{tag}')
    a('s_lshl_b32 s3, s2, 6')
    a('v_mov_b32 v1, s3')
    a(f'v_mov_b32 v2, s{STAMP_S0}')
    a('buffer_store_dword v2, v1, s[8:11], 0 offen')
    for i in range(1, n + 1):
        a(f's_sub_u32 s6, s{STAMP_S0+2+2*i}, s{STAMP_S0+2}')
        a('v_mov_b32 v2, s6')
        a(f'buffer_store_dword v2, v1, s[8:11], 0 offen offset:{4*i}')
    a(f'v_mov_b32 v2, s{STAMP_S0+2+2*(n+1)}')
    a(f'buffer_store_dword v2, v1, s[8:11], 0 offen offset:60')
    a.label(f'STAMP_DONE_{tag}')

def code_prefetch(a, tag, endlabel, lines_per_wg=4, wg_shift=3, tmp=2, dst=31, sreg=12, startlabel=None, jreg='s2'):
    a(f's_getpc_b64 s[{sreg}:{sreg+1}]')
    a.label(f'PF_{tag}')
    base = f'PF_{tag}'
    if startlabel:
        a(f's_add_u32 s{sreg}, s{sreg}, ({startlabel}-PF_{tag})')
        a(f's_addc_u32 s{sreg+1}, s{sreg+1}, 0')
        base = startlabel
    a(f's_lshr_b32 s{sreg+2}, {jreg}, {wg_shift}')
    a(f's_mul_i32 s{sreg+2}, s{sreg+2}, {lines_per_wg}')
    a(f'v_add_u32 v{tmp}, s{sreg+2}, v0')
    a(f'v_lshlrev_b32 v{tmp}, 7, v{tmp}')
    a(f'v_min_u32 v{tmp}, ({endlabel}-{base}-4), v{tmp}')
    a(f'v_cmp_gt_u32 vcc, {lines_per_wg}, v0')
    a(f's_and_saveexec_b64 s[{sreg+4}:{sreg+5}], vcc')
    a(f's_cbranch_execz PFD_{tag}')
    a(f'global_load_dword v{dst}, v{tmp}, s[{sreg}:{sreg+1}]')
    a.label(f'PFD_{tag}')
    a(f's_mov_b64 exec, s[{sreg+4}:{sreg+5}]')
```

```python
from common import *

LN_WGS = 128; CS_WGS = 56; KG_WGS = 224
K1_GRID = LN_WGS + CS_WGS + KG_WGS
SK = 848
K1_LDS = 64 * SK

def dpp_reduce(a, regs):
    steps = ['row_shr:1 row_mask:0xf bank_mask:0xf bound_ctrl:0', 'row_shr:2 row_mask:0xf bank_mask:0xf bound_ctrl:0',
             'row_shr:4 row_mask:0xf bank_mask:0xf bound_ctrl:0', 'row_shr:8 row_mask:0xf bank_mask:0xf bound_ctrl:0',
             'row_bcast:15 row_mask:0xa bank_mask:0xf', 'row_bcast:31 row_mask:0xc bank_mask:0xf']
    for st in steps:
        for r in regs:
            a(f'v_add_f32_dpp v{r}, v{r}, v{r} {st}')

def ln_role(a):
    a.label('K1_LN')
    a(f'''
    s_load_dwordx2 s[4:5], s[0:1], {KA['x']}
    s_load_dwordx2 s[6:7], s[0:1], {KA['ws']}
    v_and_b32 v1, 63, v0
    v_lshrrev_b32 v2, 6, v0
    s_and_b32 s20, s2, 7
    s_lshl_b32 s20, s20, 4
    s_lshr_b32 s21, s2, 3
    s_add_u32 s20, s20, s21
    v_readfirstlane_b32 s22, v2      ; wave
    s_lshl_b32 s23, s20, 4           ; t0
    s_lshl_b32 s24, s22, 2
    s_add_u32 s24, s24, s23
    s_mul_i32 s25, s24, 896
    v_lshlrev_b32 v3, 4, v1
    v_cmp_gt_u32 vcc, 56, v1
    v_mov_b32 v4, 0x40000000
    v_cndmask_b32 v3, v4, v3, vcc
    v_mov_b32 v5, 0
    v_mov_b32 v6, 1.0
    v_cndmask_b32 v5, v5, v6, vcc
    s_waitcnt lgkmcnt(0)
    ''')
    stamp(a, 1)
    srd(a, 8, 4, 5, ACT_BYTES)
    for r in range(4):
        a(f'buffer_load_dwordx4 v[{8+4*r}:{11+4*r}], v3, s[8:11], s25 offen offset:{r*896}')
    srd(a, 12, 6, 7, ACT_BYTES, UT_OFF)
    srd(a, 16, 6, 7, ACT_BYTES, XT_OFF)
    for r in range(4):
        a(f's_waitcnt vmcnt({3-r})')
        for i in range(4):
            a(f'v_lshlrev_b32 v{24+8*r+2*i}, 16, v{8+4*r+i}')
            a(f'v_and_b32 v{25+8*r+2*i}, 0xffff0000, v{8+4*r+i}')
    stamp(a, 2)
    F0 = lambda r, i: 24 + 8*r + 2*i
    S = lambda r: 56 + 2*r
    for r in range(4):
        a(f'v_pk_add_f32 v[{S(r)}:{S(r)+1}], v[{F0(r,0)}:{F0(r,0)+1}], v[{F0(r,1)}:{F0(r,1)+1}]')
    for r in range(4):
        a(f'v_pk_add_f32 v[{S(r)}:{S(r)+1}], v[{S(r)}:{S(r)+1}], v[{F0(r,2)}:{F0(r,2)+1}]')
    for r in range(4):
        a(f'v_pk_add_f32 v[{S(r)}:{S(r)+1}], v[{S(r)}:{S(r)+1}], v[{F0(r,3)}:{F0(r,3)+1}]')
    for r in range(4):
        a(f'v_add_f32 v{64+r}, v{S(r)}, v{S(r)+1}')
    dpp_reduce(a, [64, 65, 66, 67])
    for r in range(4):
        a(f'v_mul_f32 v{64+r}, {fhex(1.0/448)}, v{64+r}')
    for r in range(4):
        a(f'v_readlane_b32 s{28+2*r}, v{64+r}, 63')
    T = lambda i: 72 + 2*i
    for r in range(4):
        for i in range(4):
            a(f'v_pk_add_f32 v[{T(i)}:{T(i)+1}], v[{F0(r,i)}:{F0(r,i)+1}], s[{28+2*r}:{29+2*r}] op_sel_hi:[1,0] neg_lo:[0,1] neg_hi:[0,1]')
        a(f'v_pk_mul_f32 v[{S(r)}:{S(r)+1}], v[{T(0)}:{T(0)+1}], v[{T(0)}:{T(0)+1}]')
        for i in range(1, 4):
            a(f'v_pk_fma_f32 v[{S(r)}:{S(r)+1}], v[{T(i)}:{T(i)+1}], v[{T(i)}:{T(i)+1}], v[{S(r)}:{S(r)+1}]')
    for r in range(4):
        a(f'v_add_f32 v{68+r}, v{S(r)}, v{S(r)+1}')
    for r in range(4):
        a(f'v_mul_f32 v{68+r}, v{68+r}, v5')
    dpp_reduce(a, [68, 69, 70, 71])
    for r in range(4):
        a(f'v_mul_f32 v{68+r}, {fhex(1.0/448)}, v{68+r}')
    for r in range(4):
        a(f'v_cvt_pk_bf16_f32 v{80+r}, v{64+r}, v{68+r}')
    for r in range(4):
        a(f'v_lshlrev_b32 v{64+r}, 16, v{80+r}')
        a(f'v_and_b32 v{68+r}, 0xffff0000, v{80+r}')
    for r in range(4):
        a(f'v_add_f32 v{68+r}, {fhex(1e-5)}, v{68+r}')
    for r in range(4):
        a(f'v_cvt_pk_bf16_f32 v{68+r}, v{68+r}, v{68+r}')
    for r in range(4):
        a(f'v_and_b32 v{68+r}, 0xffff0000, v{68+r}')
    for r in range(4):
        a(f'v_sqrt_f32 v{68+r}, v{68+r}')
    for r in range(4):
        a(f'v_cvt_pk_bf16_f32 v{68+r}, v{68+r}, v{68+r}')
    for r in range(4):
        a(f'v_and_b32 v{68+r}, 0xffff0000, v{68+r}')
    for r in range(4):
        a(f'v_rcp_f32 v{68+r}, v{68+r}')
    for r in range(4):
        a(f'v_readlane_b32 s{28+2*r}, v{64+r}, 63')
    for r in range(4):
        a(f'v_readlane_b32 s{36+2*r}, v{68+r}, 63')
    a('s_mul_i32 s26, s22, 3840')
    a('v_lshlrev_b32 v7, 4, v1')
    a('v_add_u32 v7, s26, v7')
    for r in range(4):
        for i in range(4):
            a(f'v_pk_add_f32 v[{T(i)}:{T(i)+1}], v[{F0(r,i)}:{F0(r,i)+1}], s[{28+2*r}:{29+2*r}] op_sel_hi:[1,0] neg_lo:[0,1] neg_hi:[0,1]')
        for i in range(4):
            a(f'v_cvt_pk_bf16_f32 v{84+i}, v{T(i)}, v{T(i)+1}')
        for i in range(4):
            a(f'v_lshlrev_b32 v{T(i)}, 16, v{84+i}')
            a(f'v_and_b32 v{T(i)+1}, 0xffff0000, v{84+i}')
        for i in range(4):
            a(f'v_pk_mul_f32 v[{T(i)}:{T(i)+1}], v[{T(i)}:{T(i)+1}], s[{36+2*r}:{37+2*r}] op_sel_hi:[1,0]')
        for i in range(4):
            a(f'v_cvt_pk_bf16_f32 v{88+4*r+i}, v{T(i)}, v{T(i)+1}')
    a('s_mov_b64 s[44:45], exec')
    a('s_mov_b32 s46, -1')
    a('s_mov_b32 s47, 0x00ffffff')
    a('s_mov_b64 exec, s[46:47]')
    for r in range(4):
        a(f'ds_write_b128 v7, v[{88+4*r}:{91+4*r}] offset:{r*960}')
        a(f'ds_write_b128 v7, v[{8+4*r}:{11+4*r}] offset:{15360 + r*960}')
    a('s_mov_b64 exec, s[44:45]')
    a('s_waitcnt lgkmcnt(0)')
    stamp(a, 3)
    a('s_barrier')
    a('''
    v_lshrrev_b32 v24, 4, v1
    v_bfe_u32 v25, v1, 2, 2
    v_and_b32 v26, 3, v1
    v_mul_u32_u24 v27, 960, v25
    v_lshlrev_b32 v24, 5, v24
    v_lshlrev_b32 v26, 3, v26
    v_add3_u32 v27, v27, v24, v26
    s_lshl_b32 s26, s22, 7
    v_add_u32 v27, s26, v27
    v_lshlrev_b32 v28, 12, v1
    s_lshl_b32 s27, s22, 18          ; cg*64*4096
    s_lshl_b32 s48, s23, 1
    s_add_u32 s27, s27, s48
    v_add_u32 v28, s27, v28
    ''')
    for rep in range(2):
        if rep == 1:
            a('s_cmp_eq_u32 s22, 3')
            a('s_cbranch_scc1 K1_LN_END')
            a('v_add_u32 v27, 512, v27')
            a('v_add_u32 v28, 0x100000, v28')
        b = 32 + 16*rep
        for rq in range(4):
            a(f'ds_read_b64_tr_b16 v[{b+2*rq}:{b+2*rq+1}], v27 offset:{rq*3840}')
        for rq in range(4):
            a(f'ds_read_b64_tr_b16 v[{b+8+2*rq}:{b+8+2*rq+1}], v27 offset:{15360 + rq*3840}')
        a('s_waitcnt lgkmcnt(4)')
        a(f'buffer_store_dwordx4 v[{b}:{b+3}], v28, s[12:15], 0 offen')
        a(f'buffer_store_dwordx4 v[{b+4}:{b+7}], v28, s[12:15], 0 offen offset:16')
        a('s_waitcnt lgkmcnt(0)')
        a(f'buffer_store_dwordx4 v[{b+8}:{b+11}], v28, s[16:19], 0 offen')
        a(f'buffer_store_dwordx4 v[{b+12}:{b+15}], v28, s[16:19], 0 offen offset:16')
    a.label('K1_LN_END')
    stamp(a, 4)
    if STAMPS: a('s_waitcnt vmcnt(0)')
    stamp(a, 5)
    stamp_end(a, 0, 5, 'ln')
    a('s_endpgm')

def cs_role(a):
    a.label('K1_CS')
    a(f'''
    s_sub_u32 s20, s2, {LN_WGS}          ; j in [0,56)
    s_cmp_lt_u32 s20, 28
    s_mov_b32 s21, {KA['wu']}
    s_cselect_b32 s21, {KA['wg']}, s21
    s_cselect_b32 s22, 0, 28
    s_cselect_b32 s23, 0, {F*4}
    s_sub_u32 s20, s20, s22
    s_add_u32 s24, s0, s21
    s_addc_u32 s25, s1, 0
    s_load_dwordx2 s[4:5], s[24:25], 0
    s_load_dwordx2 s[6:7], s[0:1], {KA['ws']}
    v_and_b32 v1, 7, v0                  ; cc
    v_lshrrev_b32 v2, 3, v0              ; rg 0..31
    v_mul_u32_u24 v3, {14*F*2}, v2
    v_lshlrev_b32 v4, 4, v1
    v_add_u32 v3, v3, v4
    s_lshl_b32 s26, s20, 7
    s_waitcnt lgkmcnt(0)
    ''')
    srd(a, 8, 4, 5, D*F*2)
    srd(a, 12, 6, 7, 2*F*4, CS_OFF)
    for i in range(14):
        if i == 0:
            a('s_mov_b32 s27, s26')
        else:
            a(f's_add_u32 s27, s27, {F*2}')
        a(f'buffer_load_dwordx4 v[{8+4*i}:{11+4*i}], v3, s[8:11], s27 offen')
    A = 64
    for i in range(14):
        a(f's_waitcnt vmcnt({13-i})')
        dst = A if i == 0 else A + 8
        for k in range(4):
            a(f'v_lshlrev_b32 v{dst+2*k}, 16, v{8+4*i+k}')
            a(f'v_and_b32 v{dst+2*k+1}, 0xffff0000, v{8+4*i+k}')
        if i:
            for k in range(4):
                a(f'v_pk_add_f32 v[{A+2*k}:{A+2*k+1}], v[{A+2*k}:{A+2*k+1}], v[{A+8+2*k}:{A+8+2*k+1}]')
    a(f'''
    v_lshlrev_b32 v5, 5, v0
    ds_write_b128 v5, v[{A}:{A+3}]
    ds_write_b128 v5, v[{A+4}:{A+7}] offset:16
    v_and_b32 v6, 63, v0                 ; c
    v_lshrrev_b32 v7, 6, v0              ; part
    v_lshrrev_b32 v80, 3, v6
    v_and_b32 v81, 7, v6
    v_lshlrev_b32 v80, 5, v80
    v_lshlrev_b32 v81, 2, v81
    v_lshlrev_b32 v82, 11, v7
    v_add3_u32 v80, v80, v81, v82
    s_waitcnt lgkmcnt(0)
    s_barrier
    ''')
    for i in range(8):
        a(f'ds_read_b32 v{84+i}, v80 offset:{i*256}')
    a('s_waitcnt lgkmcnt(0)')
    for i in range(1, 8):
        a(f'v_add_f32 v84, v84, v{84+i}')
    a(f'''
    v_lshlrev_b32 v5, 2, v0
    ds_write_b32 v5, v84 offset:8192
    s_waitcnt lgkmcnt(0)
    s_barrier
    v_cmp_gt_u32 vcc, 64, v0
    s_and_saveexec_b64 s[30:31], vcc
    s_cbranch_execz K1_END
    ds_read_b32 v84, v5 offset:8192
    ds_read_b32 v85, v5 offset:{8192+256}
    ds_read_b32 v86, v5 offset:{8192+512}
    ds_read_b32 v87, v5 offset:{8192+768}
    s_lshl_b32 s28, s20, 8               ; col0*4
    s_add_u32 s28, s28, s23
    s_waitcnt lgkmcnt(0)
    v_add_f32 v84, v84, v85
    v_add_f32 v86, v86, v87
    v_add_f32 v84, v84, v86
    buffer_store_dword v84, v5, s[12:15], s28 offen
    s_endpgm
    ''')

ROWS_F = list(range(8)) + [256, 258, 260, 262] + [512, 516, 768, 772] + [1024, 1280, 1536, 1792] + [2048]

def kg_role(a):
    import math
    a.label('K1_KG')
    a(f'''
    s_sub_u32 s20, s2, {LN_WGS + CS_WGS}     ; j in [0,224)
    s_load_dwordx4 s[24:27], s[0:1], {KA['a_re']}
    s_load_dwordx4 s[28:31], s[0:1], {KA['b_re']}
    s_load_dwordx4 s[32:35], s[0:1], {KA['c_re']}
    s_load_dwordx2 s[36:37], s[0:1], {KA['log_dt']}
    s_load_dwordx2 s[6:7], s[0:1], {KA['ws']}
    s_lshl_b32 s21, s20, 10                  ; 2 channels * 512 B
    v_lshlrev_b32 v1, 1, v0                  ; n*2
    v_lshrrev_b32 v2, 6, v0
    v_readfirstlane_b32 s22, v2              ; wave
    s_waitcnt lgkmcnt(0)
    ''')
    stamp(a, 1)
    ptrs = [24, 26, 28, 30, 32, 34]
    for i, p in enumerate(ptrs):
        srd(a, 40 + 4*i, p, p + 1, D*N*2)
    srd(a, 64, 36, 37, D*2)
    srd(a, 68, 6, 7, D*KR_STRIDE, KR_OFF)
    for c in range(2):
        for i in range(6):
            a(f'buffer_load_ushort v{8+8*c+i}, v1, s[{40+4*i}:{43+4*i}], s21 offen offset:{c*512}')
        a(f's_lshl_b32 s23, s20, 2')
        a(f'v_mov_b32 v{8+8*c+6}, s23')
        a(f'buffer_load_ushort v{8+8*c+6}, v{8+8*c+6}, s[64:67], 0 offen offset:{2*c}')
    a('v_lshlrev_b32 v32, 3, v0')
    a('v_sub_u32 v32, 2047, v32')
    for j in range(9):
        a(f'v_subrev_u32 v{33+j}, {j}, v32')
    a('v_max_i32 v41, 0, v41')
    for j in range(9):
        a(f'v_cvt_f32_u32 v{33+j}, v{33+j}')
    for j in range(0, 8, 2):
        a(f'v_cvt_pk_bf16_f32 v{42+j//2}, v{33+j}, v{34+j}')
    a('v_cvt_pk_bf16_f32 v41, v41, v41')
    for j in range(0, 8, 2):
        a(f'v_lshlrev_b32 v{33+j}, 16, v{42+j//2}')
        a(f'v_and_b32 v{34+j}, 0xffff0000, v{42+j//2}')
    a('v_and_b32 v41, 0xffff0000, v41')
    for j in range(9):
        a(f'v_cvt_u32_f32 v{33+j}, v{33+j}')
    for j in range(8):
        a(f'v_lshlrev_b32 v{24+j}, 2, v{33+j}')
    a('v_lshlrev_b32 v51, 2, v41')
    a(f'''
    v_lshrrev_b32 v3, 2, v0
    v_mul_u32_u24 v3, {SK}, v3
    v_and_b32 v4, 3, v0
    v_lshlrev_b32 v4, 2, v4
    v_add_u32 v3, v3, v4
    v_and_b32 v5, 63, v0                 ; lane
    v_and_b32 v6, 31, v5                 ; i / j
    v_lshrrev_b32 v7, 5, v5              ; g / half
    s_lshl_b32 s23, s22, 4
    v_add_u32 v46, s23, v7
    v_mul_u32_u24 v46, {SK}, v46
    v_lshlrev_b32 v47, 4, v6
    v_add_u32 v46, v46, v47
    s_mul_i32 s23, s22, 3072
    v_lshlrev_b32 v48, 4, v5
    v_add_u32 v49, s23, v48
    s_lshl_b32 s23, s22, 10
    v_add_u32 v50, s23, v48
    ''')
    TOFF = 12288
    for c in range(2):
        P = 8 + 8*c
        a('s_waitcnt vmcnt(7)' if c == 0 else 's_waitcnt vmcnt(2)')
        stamp(a, 2 + 3*c)
        for i in range(7):
            a(f'v_lshlrev_b32 v{P+i}, 16, v{P+i}')
        are, aim, bre, bim, cre, cim, ldt = [P+i for i in range(7)]
        a(f'v_mul_f32 v{ldt}, {fhex(math.log2(math.e))}, v{ldt}')
        a(f'v_exp_f32 v{ldt}, v{ldt}')
        a(f'v_cvt_pk_bf16_f32 v{ldt}, v{ldt}, v{ldt}')
        a(f'v_and_b32 v{ldt}, 0xffff0000, v{ldt}')
        a(f'v_mul_f32 v{are}, v{ldt}, v{are}')
        a(f'v_mul_f32 v{aim}, v{ldt}, v{aim}')
        a(f'v_mul_f32 v{are}, {fhex(math.log2(math.e))}, v{are}')
        a(f'v_mul_f32 v{aim}, {fhex(1/(2*math.pi))}, v{aim}')
        a(f'v_mul_f32 v52, v{ldt}, v{bre}')
        a(f'v_mul_f32 v53, v{ldt}, v{bim}')
        a(f'v_mov_b32 v54, v{cre}')
        a(f'v_mov_b32 v55, v{cim}')
        Wr = 56
        cmul(a, Wr, 54, 52, 58)
        def cexp(dst, r, t):
            if r == 1:
                a(f'v_exp_f32 v{t}, v{are}')
                a(f'v_fract_f32 v{t+1}, v{aim}')
            else:
                a(f'v_mul_f32 v{t}, {fhex(float(r))}, v{are}')
                a(f'v_mul_f32 v{t+1}, {fhex(float(r))}, v{aim}')
                a(f'v_exp_f32 v{t}, v{t}')
                a(f'v_fract_f32 v{t+1}, v{t+1}')
            a(f'v_cos_f32 v{dst}, v{t+1}')
            a(f'v_sin_f32 v{dst+1}, v{t+1}')
            a(f'v_pk_mul_f32 v[{dst}:{dst+1}], v[{dst}:{dst+1}], v[{t}:{t+1}] op_sel_hi:[1,0]')
        p1, q, PP = 60, 62, 64
        cexp(p1, 1, 66); cexp(q, 8, 68); cexp(PP, 256, 70)
        pend = []
        wtmp = [100, 101, 102, 103]
        cnt = [0]
        def put(row, pair, isF):
            w = wtmp[cnt[0] % 4]; cnt[0] += 1
            a(f'v_cvt_pk_bf16_f32 v{w}, v{pair}, {"-" if isF else ""}v{pair+1}')
            pend.append((row, w))
            if len(pend) == 2:
                (r0, w0), (r1, w1) = pend
                a(f'ds_write2_b32 v3, v{w0}, v{w1} offset0:{4*r0} offset1:{4*r1}')
                pend.clear()
        def flush():
            if pend:
                (r0, w0), = pend
                a(f'ds_write_b32 v3, v{w0} offset:{16*r0}')
                pend.clear()
        q2 = 72; Ee = 74; Eo = 76; Fa = 78; p2 = 80; p4 = 82; G = 84; H = 86; P2 = 88; t1, t2, t3 = 90, 92, 94
        ER = 21
        cmul(a, q2, q, q, t1)
        cmul(a, p2, p1, p1, t2)
        cmul(a, P2, PP, PP, t3)
        a(f'v_mov_b32 v{Ee}, 1.0')
        a(f'v_mov_b32 v{Ee+1}, 0')
        put(ER + 0, Ee, False)
        put(ER + 1, q, False)
        put(0, Wr, True)
        cmul(a, p4, p2, p2, t1)
        cmul(a, Fa, Wr, p1, t2)
        cmul(a, G, Wr, PP, t3)
        put(ER + 2, q2, False)
        cmul(a, Eo, q, q2, t1)
        put(1, Fa, True)
        put(8, G, True)
        cmul(a, H, Wr, P2, t2)
        cmul(a, Ee, q2, q2, t3)
        put(ER + 3, Eo, False)
        put(12, H, True)
        ops = []
        def e_ops():
            yield lambda: put(ER + 4, Ee, False)
            je, jo = 4, 3
            while True:
                if jo + 2 <= 31:
                    jo += 2
                    yield (lambda j=jo: (cmul(a, Eo, Eo, q2, t1), put(ER + j, Eo, False)))
                if je + 2 <= 31:
                    je += 2
                    yield (lambda j=je: (cmul(a, Ee, Ee, q2, t2), put(ER + j, Ee, False)))
                if jo + 2 > 31 and je + 2 > 31:
                    break
        def f_ops():
            for b in range(2, 8):
                yield (lambda b=b: (cmul(a, Fa, Fa, p1, t3), put(b, Fa, True)))
            yield (lambda: (cmul(a, Fa, H, p4, t3), put(13, Fa, True)))
            for b in (9, 10, 11):
                yield (lambda b=b: (cmul(a, G, G, p2, t3), put(b, G, True)))
            yield (lambda: (cmul(a, G, H, P2, t3), put(16, G, True)))
            yield (lambda: (cmul(a, H, H, PP, t3), put(14, H, True)))
            yield (lambda: (cmul(a, Fa, H, p4, t3), put(15, Fa, True)))
            for b in (17, 18, 19, 20):
                yield (lambda b=b: (cmul(a, G, G, PP, t3), put(b, G, True)))
        eg, fg = e_ops(), f_ops()
        alive = [eg, eg, fg]
        done = set()
        while True:
            progressed = False
            for g in (eg, fg, eg):
                if id(g) in done: continue
                try:
                    next(g)(); progressed = True
                except StopIteration:
                    done.add(id(g))
            if not progressed: break
        flush()
        stamp(a, 3 + 3*c)
        ACC = 104
        a('s_waitcnt lgkmcnt(0)')
        for s in range(8):
            b = 120 + 8*(s % 2)
            if s == 0:
                pass
        def rd(s):
            b = 120 + 8*(s % 4)
            a(f'ds_read_b128 v[{b}:{b+3}], v46 offset:{2*s*SK}')
            a(f'ds_read_b128 v[{b+4}:{b+7}], v46 offset:{2*s*SK + ER*16}')
        for s in range(4): rd(s)
        for s in range(8):
            b = 120 + 8*(s % 4)
            a(f's_waitcnt lgkmcnt({min(6, 2*(7-s))})')
            src = '0' if s == 0 else f'v[{ACC}:{ACC+15}]'
            a(f'v_mfma_f32_32x32x16_bf16 v[{ACC}:{ACC+15}], v[{b}:{b+3}], v[{b+4}:{b+7}], {src}')
            if s + 4 < 8: rd(s + 4)
        a('s_barrier')
        for qd in range(3):
            a(f'ds_write_b128 v49, v[{ACC+4*qd}:{ACC+4*qd+3}] offset:{qd*1024}')
        a('s_waitcnt lgkmcnt(0)')
        a('s_barrier')
        a(f's_cmp_eq_u32 s22, 3')
        a(f's_cbranch_scc1 K1_KG_SKIP{c}')
        for w in range(4):
            a(f'ds_read_b128 v[{120+4*w}:{123+4*w}], v50 offset:{w*3072}')
        a('s_waitcnt lgkmcnt(0)')
        a('v_pk_add_f32 v[120:121], v[120:121], v[124:125]')
        a('v_pk_add_f32 v[122:123], v[122:123], v[126:127]')
        a('v_pk_add_f32 v[128:129], v[128:129], v[132:133]')
        a('v_pk_add_f32 v[130:131], v[130:131], v[134:135]')
        a('v_pk_add_f32 v[120:121], v[120:121], v[128:129]')
        a('v_pk_add_f32 v[122:123], v[122:123], v[130:131]')
        a('v_lshlrev_b32 v136, 5, v6')
        for qq in range(3):
            a(f's_cmp_lg_u32 s22, {qq}')
            a(f's_cbranch_scc1 K1_KG_Q{c}_{qq}')
            for r in range(4):
                row0 = 8*qq + r; row1 = 8*qq + 4 + r
                r0 = ROWS_F[row0]
                if row1 <= 20:
                    r1 = ROWS_F[row1]
                    if row1 == 20:
                        r1 = 2048
                else:
                    r1 = 2304 + r
                a(f'v_mul_u32_u24 v137, {4*(r1 - r0)}, v7')
                a(f'v_add_u32 v137, v137, v136')
                a(f'ds_write_b32 v137, v{120+r} offset:{TOFF + 4*r0}')
            a.label(f'K1_KG_Q{c}_{qq}')
        a.label(f'K1_KG_SKIP{c}')
        a('s_waitcnt lgkmcnt(0)')
        a('s_barrier')
        for j in range(8):
            a(f'ds_read_b32 v{120+j}, v{24+j} offset:{TOFF}')
        a(f'ds_read_b32 v128, v51 offset:{TOFF}')
        a('v_cmp_eq_u32 vcc, 255, v0')
        a('s_waitcnt lgkmcnt(0)')
        a('v_cndmask_b32 v128, v128, 0, vcc') if False else None
        a('v_mov_b32 v137, 0')
        a('v_cndmask_b32 v128, v128, v137, vcc')
        for j in range(0, 8, 2):
            a(f'v_cvt_pk_bf16_f32 v{132+j//2}, v{120+j}, v{121+j}')
        for j in range(0, 8, 2):
            a(f'v_cvt_pk_bf16_f32 v{140+j//2}, v{121+j}, v{122+j}')
        a(f's_lshl_b32 s23, s20, 1')
        a(f's_add_u32 s23, s23, {c}')
        a(f's_mul_i32 s23, s23, {KR_STRIDE}')
        a('v_lshlrev_b32 v136, 4, v0')
        a('buffer_store_dwordx4 v[132:135], v136, s[68:71], s23 offen')
        a(f's_add_u32 s74, s23, {KR_VER}')
        a('buffer_store_dwordx4 v[140:143], v136, s[68:71], s74 offen')
        a('v_mov_b32 v144, 0\nv_mov_b32 v145, 0\nv_mov_b32 v146, 0\nv_mov_b32 v147, 0')
        a('v_cmp_gt_u32 vcc, 4, v0')
        a('s_and_saveexec_b64 s[72:73], vcc')
        a(f's_cbranch_execz K1_KG_Z{c}')
        a('v_add_u32 v137, 4096, v136')
        a('buffer_store_dwordx4 v[144:147], v137, s[68:71], s23 offen')
        a('buffer_store_dwordx4 v[144:147], v137, s[68:71], s74 offen')
        a.label(f'K1_KG_Z{c}')
        a('s_mov_b64 exec, s[72:73]')
        stamp(a, 4 + 3*c)
        if c == 0:
            a('s_barrier')
    if STAMPS: a('s_waitcnt vmcnt(0)')
    stamp(a, 8)
    stamp_end(a, 0, 8, 'kg')
    a('s_endpgm')

def gen_k1():
    a = Asm()
    stamp_begin(a)
    a(f'''
    s_cmp_lt_u32 s2, {LN_WGS}
    s_cbranch_scc1 K1_LN
    s_cmp_lt_u32 s2, {LN_WGS + CS_WGS}
    s_cbranch_scc1 K1_CS
    s_cmp_lt_u32 s2, {K1_GRID}
    s_cbranch_scc1 K1_KG
    ''')
    a.label('K1_END')
    a('s_endpgm')
    ln_role(a); cs_role(a); kg_role(a)
    return kernel_text('k1_kernel', a, vgpr=152, sgpr=102)
```

```python
from common import *

K2_GRID = 224
K2_BLOCK = 512
CPY = 4160
UOFF = 8 * CPY + 480
CH_LDS = 37888
K2_LDS = 2 * CH_LDS
ACC = 16; PRE = 32; BR = 64; AR = 96
PD = 4

def schedule(role):
    steps = []
    if role == 'Q':
        tiles = [5, 4, 3, 2]
        for e in range(40, -8, -1):
            mf = []
            for sl, h in enumerate(tiles):
                i = 8*h - e
                if 0 <= i <= 8*h + 7: mf.append((sl, i, ('B', e)))
            steps.append(dict(loads=[('B', e), ('A', 40 - e)], mf=mf))
    else:
        tiles = [7, 6, 1, 0]
        for e in range(56, -8, -1):
            s = 56 - e
            loads = [('B', e), ('A', s)]
            mf = []
            for sl, h in enumerate(tiles[:2]):
                i = 8*h - e
                if 0 <= i <= 8*h + 7: mf.append((sl, i, ('B', e)))
            if s < 16:
                e2 = 8 - s
                loads.append(('C', e2))
                mf.append((2, s, ('C', e2)))
                if s >= 8: mf.append((3, s - 8, ('C', e2)))
            steps.append(dict(loads=loads, mf=mf))
    return tiles, steps

def reg_of(role, kind, idx):
    if kind == 'A':
        ring = 32 if role == 'Q' else 16
        return AR + 4 * (idx % ring)
    if kind == 'B':
        return BR + 4 * ((idx + 8) % 8)
    return AR + 64 + 4 * ((idx + 8) % 8)

def ld(a, role, kind, idx):
    r = reg_of(role, kind, idx)
    if kind == 'A':
        a(f'ds_read_b128 v[{r}:{r+3}], v8 offset:{64*(63-idx)}')
    else:
        a(f'ds_read_b128 v[{r}:{r+3}], v9 offset:{64*(idx+7)}')

def mainloop(a, role):
    tiles, steps = schedule(role)
    n = len(steps)
    for s in range(min(PD, n)):
        for k, i in steps[s]['loads']: ld(a, role, k, i)
    started = set()
    for s, st in enumerate(steps):
        allowed = sum(len(steps[s+k]['loads']) for k in range(1, PD) if s + k < n)
        a(f's_waitcnt lgkmcnt({min(allowed, 15)})')
        nxt = list(steps[s+PD]['loads']) if s + PD < n else []
        for (sl, i, (bk, e)) in st['mf']:
            ar = reg_of(role, 'A', i); br = reg_of(role, bk, e)
            c = ACC + 4*sl
            src = f'v[{c}:{c+3}]' if sl in started else '0'
            started.add(sl)
            a(f'v_mfma_f32_16x16x32_bf16 v[{c}:{c+3}], v[{ar}:{ar+3}], v[{br}:{br+3}], {src}')
            if nxt:
                k, i2 = nxt.pop(0); ld(a, role, k, i2)
        for k, i2 in nxt: ld(a, role, k, i2)
    return tiles

def helper(a):
    a(f'''
    s_load_dwordx4 s[8:11], s[0:1], {KA['wg']}
    s_load_dwordx2 s[12:13], s[0:1], {KA['wd']}
    s_sub_u32 s31, s30, 4                ; hw 0..3
    s_and_b32 s32, s2, 7                 ; xcd
    s_lshr_b32 s33, s2, 3                ; j 0..27
    v_lshlrev_b32 v3, 4, v1
    s_barrier
    ''')
    a(f'''
    s_getpc_b64 s[20:21]
    PF_k2h:
    s_add_u32 s20, s20, (k3_kernel-PF_k2h)
    s_addc_u32 s21, s21, 0
    s_lshl_b32 s22, s33, 3
    v_add_u32 v4, s22, v1
    v_lshlrev_b32 v4, 7, v4
    v_min_u32 v4, (ALL_CODE_END-k3_kernel-4), v4
    v_cmp_gt_u32 vcc, 8, v1
    s_and_saveexec_b64 s[24:25], vcc
    global_load_dword v8, v4, s[20:21]
    s_mov_b64 exec, s[24:25]
    s_waitcnt lgkmcnt(0)
    ''')
    srd(a, 40, 8, 9, D*F*2); srd(a, 44, 10, 11, D*F*2); srd(a, 48, 12, 13, D*F*2)
    import os
    GRAN = int(os.environ.get('PF_GRAN', '128'))
    per_row = 1024 // GRAN
    rows_per_instr = 64 // per_row
    a(f'''
    s_and_b32 s34, s32, 3
    s_mul_i32 s34, s34, 896
    s_and_b32 s34, s34, 0xffffff80
    s_lshl_b32 s35, s33, 4
    s_lshl_b32 s36, s31, 2
    s_add_u32 s35, s35, s36
    s_mul_i32 s35, s35, 3584
    s_add_u32 s35, s35, s34
    v_and_b32 v5, {per_row-1}, v1
    v_mul_u32_u24 v5, {GRAN}, v5
    v_lshrrev_b32 v6, {per_row.bit_length()-1}, v1
    v_mul_u32_u24 v6, 3584, v6
    v_add_u32 v5, v5, v6
    ''')
    n = 0
    for i in range(0, 4, rows_per_instr) if rows_per_instr <= 4 else [0]:
        if rows_per_instr > 4:
            a('s_mov_b32 s38, -1\ns_mov_b32 s39, 0\ns_mov_b64 exec, s[38:39]')
        a(f's_add_u32 s37, s35, {i*3584}')
        a(f'buffer_load_dword v{8+n}, v5, s[40:43], s37 offen'); n += 1
        a(f'buffer_load_dword v{8+n}, v5, s[44:47], s37 offen'); n += 1
    a('s_mov_b64 exec, -1')
    a(f'''
    s_mul_i32 s35, s33, 57344
    s_mul_i32 s36, s31, {14*1024}
    s_add_u32 s35, s35, s36
    v_mul_u32_u24 v5, {GRAN}, v1
    ''')
    span = 64 * GRAN
    off = 0
    while off < 14336:
        if off + span > 14336:
            lanes = (14336 - off) // GRAN
            a(f'v_cmp_gt_u32 vcc, {lanes}, v1')
            a('s_and_saveexec_b64 s[38:39], vcc')
        a(f's_add_u32 s37, s35, {off}')
        a(f'buffer_load_dword v{8+n}, v5, s[48:51], s37 offen'); n += 1
        off += span

def gen_k2():
    a = Asm()
    stamp_begin(a)
    a(f'''
    s_cmp_ge_u32 s2, {K2_GRID}
    s_cbranch_scc1 K2_END
    s_load_dwordx2 s[4:5], s[0:1], {KA['ws']}
    s_load_dwordx2 s[6:7], s[0:1], {KA['dskip']}
    v_and_b32 v1, 63, v0
    v_lshrrev_b32 v2, 6, v0
    v_readfirstlane_b32 s30, v2          ; wave
    s_cmp_ge_u32 s30, 4
    s_cbranch_scc1 K2_HELP
    s_lshr_b32 s31, s30, 1
    s_and_b32 s32, s30, 1                ; role 0=P 1=Q
    s_lshl_b32 s33, s2, 1
    s_add_u32 s33, s33, s31              ; channel d
    s_mul_i32 s34, s31, {CH_LDS}
    v_lshlrev_b32 v3, 4, v1              ; lane*16
    s_waitcnt lgkmcnt(0)
    ''')
    stamp(a, 1)
    srd(a, 8, 4, 5, D*KR_STRIDE, KR_OFF)
    srd(a, 12, 4, 5, ACT_BYTES, UT_OFF)
    srd(a, 16, 4, 5, ACT_BYTES, XT_OFF)
    srd(a, 20, 4, 5, ACT_BYTES, HT_OFF)
    srd(a, 24, 6, 7, D*2)
    a(f'''
    s_mul_i32 s35, s33, {KR_STRIDE}
    s_lshl_b32 s36, s32, 3               ; 2*(4*role)
    s_add_u32 s35, s35, s36
    s_mul_i32 s37, s32, {4*CPY}
    s_add_u32 s37, s37, s34
    ''')
    for cc in range(4):
        a(f's_add_u32 m0, s37, {cc*CPY}')
        a(f's_add_u32 s36, s35, {(cc & 1)*KR_VER + (cc & ~1)*2}')
        for qd in range(4):
            a(f'buffer_load_dwordx4 v3, s[8:11], s36 offen offset:{qd*1024} lds')
    a(f'''
    s_lshl_b32 s38, s33, 12              ; d*4096
    s_lshl_b32 s39, s32, 11              ; role*2048
    s_add_u32 s40, s38, s39
    s_add_u32 s41, s34, s39
    s_add_u32 m0, s41, {UOFF}
    s_nop 0
    buffer_load_dwordx4 v3, s[12:15], s40 offen lds
    buffer_load_dwordx4 v3, s[12:15], s40 offen offset:1024 lds
    ''')
    a('''
    v_and_b32 v4, 15, v1                 ; n / m
    v_lshrrev_b32 v5, 4, v1              ; q / g
    v_lshlrev_b32 v6, 5, v4
    v_lshl_add_u32 v6, v5, 3, v6         ; 32n + 8q
    s_lshl_b32 s42, s33, 1
    v_mov_b32 v7, s42
    buffer_load_ushort v7, v7, s[24:27], 0 offen
    ''')
    a('s_cmp_eq_u32 s32, 0')
    for sl in range(4):
        a(f's_mov_b32 s48, {512*[5,4,3,2][sl]}')
        a(f's_cselect_b32 s{44+sl}, {512*[7,6,1,0][sl]}, s48')
        a(f's_add_u32 s{44+sl}, s{44+sl}, s38')
        a('s_cmp_eq_u32 s32, 0')
    for sl in range(4):
        a(f'buffer_load_dwordx2 v[{PRE+8*sl}:{PRE+8*sl+1}], v6, s[12:15], s{44+sl} offen')
        a(f'buffer_load_dwordx2 v[{PRE+8*sl+4}:{PRE+8*sl+5}], v6, s[16:19], s{44+sl} offen')
    a(f'''
    v_mov_b32 v10, 0
    v_mov_b32 v11, 0
    v_mov_b32 v12, 0
    v_mov_b32 v13, 0
    v_mul_u32_u24 v14, {CPY}, v1
    v_add_u32 v14, s37, v14
    v_cmp_gt_u32 vcc, 4, v1
    s_and_saveexec_b64 s[50:51], vcc
    ds_write_b128 v14, v[10:13] offset:4096
    s_mov_b64 exec, s[50:51]
    v_add_u32 v14, s34, v3
    v_cmp_gt_u32 vcc, 30, v1
    s_and_saveexec_b64 s[50:51], vcc
    ds_write_b128 v14, v[10:13] offset:{8*CPY}
    s_mov_b64 exec, s[50:51]
    ; A address
    v_and_b32 v14, 7, v4
    v_sub_u32 v14, 7, v14
    v_mul_u32_u24 v14, {CPY}, v14
    v_lshrrev_b32 v15, 3, v4
    v_sub_u32 v15, v5, v15               ; g - (m>>3)
    v_lshl_add_u32 v8, v15, 4, v14
    v_add_u32 v8, 16, v8
    v_add_u32 v8, s34, v8
    v_lshlrev_b32 v9, 5, v4
    v_lshl_add_u32 v9, v5, 4, v9
    v_add_u32 v9, {UOFF - 480}, v9
    v_add_u32 v9, s34, v9
    ''')
    a('s_waitcnt vmcnt(0)')
    stamp(a, 2)
    a('v_lshlrev_b32 v7, 16, v7')
    for sl in range(4):
        b = PRE + 8*sl
        a(f'v_lshlrev_b32 v10, 16, v{b}')
        a(f'v_and_b32 v11, 0xffff0000, v{b}')
        a(f'v_lshlrev_b32 v12, 16, v{b+1}')
        a(f'v_and_b32 v13, 0xffff0000, v{b+1}')
        a(f'v_pk_mul_f32 v[10:11], v[10:11], v[6:7] op_sel:[0,1] op_sel_hi:[1,1]')
        a(f'v_pk_mul_f32 v[12:13], v[12:13], v[6:7] op_sel:[0,1] op_sel_hi:[1,1]')
        a(f'v_cvt_pk_bf16_f32 v10, v10, v11')
        a(f'v_cvt_pk_bf16_f32 v12, v12, v13')
        a(f'v_lshlrev_b32 v{b}, 16, v10')
        a(f'v_and_b32 v{b+1}, 0xffff0000, v10')
        a(f'v_lshlrev_b32 v{b+2}, 16, v12')
        a(f'v_and_b32 v{b+3}, 0xffff0000, v12')
        a(f'v_and_b32 v{b+7}, 0xffff0000, v{b+5}')
        a(f'v_lshlrev_b32 v{b+6}, 16, v{b+5}')
        a(f'v_and_b32 v{b+5}, 0xffff0000, v{b+4}')
        a(f'v_lshlrev_b32 v{b+4}, 16, v{b+4}')
    a('s_waitcnt lgkmcnt(0)')
    a('s_barrier')
    stamp(a, 3)
    a('s_cmp_eq_u32 s32, 0')
    a('s_cbranch_scc0 K2_Q')
    mainloop(a, 'P')
    a('s_branch K2_EPI')
    a.label('K2_Q')
    mainloop(a, 'Q')
    a.label('K2_EPI')
    stamp(a, 4)
    for sl in range(4):
        c = ACC + 4*sl; b = PRE + 8*sl
        a(f'v_cvt_pk_bf16_f32 v10, v{c}, v{c+1}')
        a(f'v_cvt_pk_bf16_f32 v12, v{c+2}, v{c+3}')
        a(f'v_lshlrev_b32 v{c}, 16, v10')
        a(f'v_and_b32 v{c+1}, 0xffff0000, v10')
        a(f'v_lshlrev_b32 v{c+2}, 16, v12')
        a(f'v_and_b32 v{c+3}, 0xffff0000, v12')
        a(f'v_pk_add_f32 v[{c}:{c+1}], v[{c}:{c+1}], v[{b}:{b+1}]')
        a(f'v_pk_add_f32 v[{c+2}:{c+3}], v[{c+2}:{c+3}], v[{b+2}:{b+3}]')
        a(f'v_cvt_pk_bf16_f32 v10, v{c}, v{c+1}')
        a(f'v_cvt_pk_bf16_f32 v12, v{c+2}, v{c+3}')
        a(f'v_lshlrev_b32 v{c}, 16, v10')
        a(f'v_and_b32 v{c+1}, 0xffff0000, v10')
        a(f'v_lshlrev_b32 v{c+2}, 16, v12')
        a(f'v_and_b32 v{c+3}, 0xffff0000, v12')
        a(f'v_pk_add_f32 v[{c}:{c+1}], v[{c}:{c+1}], v[{b+4}:{b+5}]')
        a(f'v_pk_add_f32 v[{c+2}:{c+3}], v[{c+2}:{c+3}], v[{b+6}:{b+7}]')
        a(f'v_cvt_pk_bf16_f32 v{c}, v{c}, v{c+1}')
        a(f'v_cvt_pk_bf16_f32 v{c+1}, v{c+2}, v{c+3}')
        a(f'buffer_store_dwordx2 v[{c}:{c+1}], v6, s[20:23], s{44+sl} offen')
    if STAMPS: a('s_waitcnt vmcnt(0)')
    stamp(a, 5)
    stamp_end(a, 1, 5, 'k2')
    a('s_endpgm')
    a.label('K2_HELP')
    helper(a)
    a.label('K2_END')
    a('s_endpgm')
    return kernel_text('k2_kernel', a, vgpr=224, sgpr=102)
```

```python
from common import *
import os
EXP = os.environ.get('EXP', '')

K3_GRID = 256
K3_BLOCK = 512
GS = 1056
GATE, UP, HOF = 0, 8*GS + 16, 16*GS + 16
STG = HOF + 8*GS
NST = 5
NCH = 14
INFL = int(os.environ.get('INFL', '3'))
CSL = 0
STATS = 896
SB = 2048
K3_LDS = SB + NST * STG
SET = [32, 76]
ACC = 128
RS_OFF = CS_OFF + 0x4000
STF = os.environ.get('K3_ST', 'sc1')

def acc(j, u): return ACC + 4 * (4*j + u)

def compute_wave(a):
    a(f'''
    s_lshr_b32 s31, s30, 1               ; tw
    s_and_b32 s32, s30, 1                ; fw
    v_lshrrev_b32 v2, 4, v1              ; g
    v_bfe_u32 v3, v1, 2, 2               ; r
    v_and_b32 v4, 3, v1                  ; c
    v_and_b32 v5, 1, v2
    v_lshl_add_u32 v5, v5, 2, v3         ; 4(g&1) + r
    v_mul_u32_u24 v5, {GS}, v5
    v_lshrrev_b32 v6, 1, v2
    v_lshl_add_u32 v5, v6, 8, v5
    v_and_b32 v7, 1, v4
    v_lshl_add_u32 v6, v7, 3, v5         ; + (c&1)*8
    v_lshrrev_b32 v7, 1, v4
    v_mul_u32_u24 v7, {UP}, v7
    v_add3_u32 v6, v6, v7, 0
    s_and_b32 s33, s21, 1
    s_lshl_b32 s33, s33, 5
    s_add_u32 s33, s33, {SB}
    s_mul_i32 s35, s32, 96
    s_add_u32 s35, s35, s33
    v_add_u32 v8, s35, v6
    v_add_u32 v9, {2*STG}, v8
    v_add_u32 v10, {4*STG}, v8
    s_lshl_b32 s35, s32, 4
    s_add_u32 s35, s35, 192
    s_add_u32 s35, s35, s33
    v_add_u32 v11, s35, v6
    v_add_u32 v12, {2*STG}, v11
    v_add_u32 v13, {4*STG}, v11
    v_lshl_add_u32 v6, v4, 3, v5         ; B: common + c*8
    s_lshl_b32 s35, s31, 7               ; 4 tw * 32 B
    s_add_u32 s35, s35, {SB + HOF}
    s_lshl_b32 s36, s32, 6               ; 64 fw
    s_add_u32 s37, s35, s36
    v_add_u32 v14, s37, v6               ; u = 0,1
    v_add_u32 v15, {2*STG}, v14
    v_add_u32 v16, {4*STG}, v14
    s_xor_b32 s36, s36, 64
    s_add_u32 s37, s35, s36
    v_add_u32 v17, s37, v6               ; u = 2,3
    v_add_u32 v18, {2*STG}, v17
    v_add_u32 v19, {4*STG}, v17
    v_mov_b32 v120, 0x3f803f80
    v_mov_b32 v121, 0x3f803f80
    v_mov_b32 v122, 0x3f803f80
    v_mov_b32 v123, 0x3f803f80
    v_and_b32 v20, 15, v1                ; n
    v_and_b32 v21, 3, v20                ; i wanted
    v_cmp_eq_u32 s[60:61], 1, v21
    v_cmp_eq_u32 s[62:63], 2, v21
    v_cmp_eq_u32 s[64:65], 3, v21
    v_lshrrev_b32 v21, 2, v20
    v_cmp_eq_u32 s[66:67], v21, v2       ; q == n>>2
    v_cmp_gt_u32 s[68:69], 32, v1
    ''')
    def reads(k):
        st = k % NST; pr = st >> 1; off = (st & 1) * STG
        S = SET[k & 1]
        out = []
        for u in range(4):
            r = S + 28 + 4*u
            vb = (14 if u < 2 else 17) + pr
            for rho in range(2):
                out.append(f'ds_read_b64_tr_b16 v[{r+2*rho}:{r+2*rho+1}], v{vb} offset:{off + rho*512 + 32*(u & 1)}')
        for j in range(7):
            r = S + 4*j
            for rho in range(2):
                if j < 6:
                    out.append(f'ds_read_b64_tr_b16 v[{r+2*rho}:{r+2*rho+1}], v{8+pr} offset:{off + rho*512 + 16*j}')
                else:
                    out.append(f'ds_read_b64_tr_b16 v[{r+2*rho}:{r+2*rho+1}], v{11+pr} offset:{off + rho*512}')
        return out
    def mfmas(k):
        S = SET[k & 1]
        out = []
        for j in range(7):
            for u in range(4):
                c = acc(j, u)
                src = '0' if k == 0 else f'v[{c}:{c+3}]'
                out.append(f'v_mfma_f32_16x16x32_bf16 v[{c}:{c+3}], v[{S+4*j}:{S+4*j+3}], v[{S+28+4*u}:{S+28+4*u+3}], {src}')
        return out
    G0, S0, G1, S1 = 240, 244, 248, 252
    def dots(k):
        S = SET[k & 1]
        out = []
        for u, (G, Sm) in enumerate(((G0, S0), (G1, S1))):
            b = S + 28 + 4*u
            sg = '0' if k == 0 else f'v[{G}:{G+3}]'
            ss = '0' if k == 0 else f'v[{Sm}:{Sm+3}]'
            out.append(f'v_mfma_f32_16x16x32_bf16 v[{G}:{G+3}], v[{b}:{b+3}], v[{b}:{b+3}], {sg}')
            out.append(f'v_mfma_f32_16x16x32_bf16 v[{Sm}:{Sm+3}], v[120:123], v[{b}:{b+3}], {ss}')
        return out
    def stats_tail():
        return f'''
        v_cndmask_b32 v24, v{S1}, v{S0}, s[68:69]
        v_cndmask_b32 v25, v{G0}, v{G0+1}, s[60:61]
        v_cndmask_b32 v26, v{G1}, v{G1+1}, s[60:61]
        v_cndmask_b32 v25, v25, v{G0+2}, s[62:63]
        v_cndmask_b32 v26, v26, v{G1+2}, s[62:63]
        v_cndmask_b32 v25, v25, v{G0+3}, s[64:65]
        v_cndmask_b32 v26, v26, v{G1+3}, s[64:65]
        v_mov_b32 v27, 0
        v_cndmask_b32 v25, v27, v25, s[66:67]
        v_cndmask_b32 v26, v27, v26, s[66:67]
        v_permlane32_swap_b32 v25, v26
        v_add_f32 v26, v25, v26
        v_mov_b32 v27, v26
        v_permlane16_swap_b32 v26, v27
        v_add_f32 v26, v26, v27
        v_mul_f32 v24, {fhex(1.0/448)}, v24
        v_mul_f32 v26, {fhex(1.0/448)}, v26
        v_fma_f32 v26, -v24, v24, v26
        v_max_f32 v26, 0, v26
        v_cvt_pk_bf16_f32 v25, v24, v26
        v_lshlrev_b32 v24, 16, v25
        v_and_b32 v26, 0xffff0000, v25
        v_add_f32 v26, {fhex(1e-5)}, v26
        v_cvt_pk_bf16_f32 v26, v26, v26
        v_and_b32 v26, 0xffff0000, v26
        v_sqrt_f32 v26, v26
        v_cvt_pk_bf16_f32 v26, v26, v26
        v_and_b32 v26, 0xffff0000, v26
        v_rcp_f32 v26, v26
        v_lshlrev_b32 v21, 2, v1
        s_lshl_b32 s36, s30, 8
        v_add_u32 v22, s36, v21
        ds_write_b32 v22, v24 offset:{STATS}
        v_mul_f32 v26, v26, v26
        '''.strip().split('\n')
    for it in range(NCH + 1):
        if it < NCH: a('s_barrier')
        rd = reads(it) if it < NCH else []
        mf = mfmas(it - 1) if it >= 1 else []
        dt = dots(it - 1) if it >= 1 else []
        if 'nomfma' in EXP and 1 < it < NCH: mf = []
        if 'nodots' in EXP and 1 < it < NCH: dt = []
        if 'noread' in EXP and 1 < it < NCH: rd = []
        if it == NCH:
            for x in dt: a(x)
            fill = [x.strip() for x in stats_tail()]
            for i, x in enumerate(mf):
                a(x)
                if i >= 3:
                    for _ in range(2):
                        if fill: a(fill.pop(0))
            for x in fill: a(x)
        elif not mf:
            for x in rd: a(x)
            for x in dt: a(x)
        else:
            mf = dt + mf
            for i, x in enumerate(mf):
                a(x)
                if rd: a(rd.pop(0))
            for x in rd: a(x)
        if it < NCH: a('s_waitcnt lgkmcnt(0)')
        if it == 0: stamp(a, 2)
    stamp(a, 3)
    a(f'''
    v_lshrrev_b32 v3, 5, v1              ; half
    v_bfe_u32 v4, v1, 4, 1               ; q
    s_mul_i32 s37, s32, 192              ; 6 blocks * 8 f * 4 B
    v_lshlrev_b32 v6, 4, v4
    v_add_u32 v9, s37, v6
    s_lshl_b32 s37, s32, 5
    s_add_u32 s37, s37, 384
    v_add_u32 v10, s37, v6
    ''')
    for j in range(7):
        va = 9 if j < 6 else 10
        o = 32*j if j < 6 else 0
        a(f'ds_read_b128 v[{32+8*j}:{35+8*j}], v{va} offset:{CSL + o}')
        a(f'ds_read_b128 v[{36+8*j}:{39+8*j}], v{va} offset:{CSL + 448 + o}')
    a(f'''
    v_mul_u32_u24 v7, 57344, v3
    v_and_b32 v8, 31, v1
    v_lshl_add_u32 v7, v8, 4, v7
    s_lshl_b32 s38, s20, 3               ; 8 r
    s_lshl_b32 s34, s31, 2
    s_add_u32 s38, s38, s34              ; + 4 tw
    s_lshl_b32 s34, s32, 1
    s_add_u32 s39, s38, s34
    s_xor_b32 s34, s34, 2
    s_add_u32 s38, s38, s34
    s_lshl_b32 s44, s39, 4
    s_mul_i32 s39, s39, 57344
    s_mul_i32 s38, s38, 57344
    s_mul_i32 s45, s21, {7*512}
    s_mul_i32 s46, s32, {3*512}
    s_add_u32 s46, s46, s45
    s_lshl_b32 s47, s32, 3
    s_add_u32 s47, s47, s45
    s_add_u32 s47, s47, {6*512}
    s_add_u32 s40, s39, s46
    s_add_u32 s41, s39, s47
    s_add_u32 s42, s38, s46
    s_add_u32 s43, s38, s47
    s_xor_b32 s36, s30, 1
    s_lshl_b32 s36, s36, 8
    v_add_u32 v22, s36, v21
    ''')
    a('s_cmp_lg_u32 s21, 0')
    a('s_cbranch_scc1 K3_NORS')
    a(f'''
    v_and_b32 v5, 15, v1
    v_lshl_add_u32 v5, v3, 4, v5
    v_lshlrev_b32 v5, 2, v5
    s_lshl_b32 s44, s44, 2
    buffer_store_dword v26, v5, s[48:51], s44 offen
    ''')
    a.label('K3_NORS')
    a('s_waitcnt lgkmcnt(0)')
    stamp(a, 4)
    OUT = 88
    for pr in range(2):
        st = 24 if pr == 0 else 28
        for j in range(7):
            T1 = acc(j, 2*pr); T2 = acc(j, 2*pr + 1)
            for i in range(4):
                a(f'v_permlane32_swap_b32 v{T1+i}, v{T2+i}')
        if pr == 0:
            a('s_barrier')
            a(f'ds_read_b32 v28, v22 offset:{STATS}')
        else:
            a('s_waitcnt lgkmcnt(0)')
        for j in range(7):
            T1 = acc(j, 2*pr); T2 = acc(j, 2*pr + 1)
            cg = 32 + 8*j; cu = 36 + 8*j
            for hh in range(2):
                a(f'v_pk_fma_f32 v[{T1+2*hh}:{T1+2*hh+1}], v[{cg+2*hh}:{cg+2*hh+1}], v[{st}:{st+1}], v[{T1+2*hh}:{T1+2*hh+1}] op_sel:[0,0,0] op_sel_hi:[1,0,1] neg_lo:[0,1,0] neg_hi:[0,1,0]')
                a(f'v_pk_fma_f32 v[{T2+2*hh}:{T2+2*hh+1}], v[{cu+2*hh}:{cu+2*hh+1}], v[{st}:{st+1}], v[{T2+2*hh}:{T2+2*hh+1}] op_sel:[0,0,0] op_sel_hi:[1,0,1] neg_lo:[0,1,0] neg_hi:[0,1,0]')
            for hh in range(2):
                a(f'v_pk_mul_f32 v[{T1+2*hh}:{T1+2*hh+1}], v[{T1+2*hh}:{T1+2*hh+1}], v[{T2+2*hh}:{T2+2*hh+1}]')
            o = OUT + 16*pr + 4*(j >> 1) + 2*(j & 1)
            a(f'v_cvt_pk_bf16_f32 v{o}, v{T1}, v{T1+1}')
            a(f'v_cvt_pk_bf16_f32 v{o+1}, v{T1+2}, v{T1+3}')
            if j < 6 and (j & 1):
                ob = OUT + 16*pr + 4*(j >> 1)
                a(f'buffer_store_dwordx4 v[{ob}:{ob+3}], v7, s[16:19], s{40 + 2*pr} offen offset:{512*(j >> 1)} {STF}')
            if j == 6:
                a(f'buffer_store_dwordx2 v[{o}:{o+1}], v7, s[16:19], s{41 + 2*pr} offen {STF}')

def loader_wave(a):
    def issue(k):
        st = k % NST
        base = SB + st * STG
        a(f's_add_u32 s45, s44, {k}')
        a('s_cmp_ge_u32 s45, 14')
        a('s_cselect_b32 s46, 14, 0')
        a('s_sub_u32 s45, s45, s46')
        a(f's_mul_i32 s46, s45, {32*3584}')
        a('s_add_u32 s46, s46, s32')
        a('s_lshl_b32 s47, s45, 17')
        a('s_add_u32 s47, s47, s35')
        for i in range(2):
            if 'noh' in EXP: break
            a(f's_add_u32 m0, s37, {base + HOF + i*GS}')
            if i == 1: a(f's_add_u32 s39, s47, {4*4096}')
            a(f'buffer_load_dwordx4 v8, s[12:15], s{39 if i else 47} offen lds')
        for mat, (sr, reg) in enumerate(((4, GATE), (8, UP))):
            if 'now' in EXP: break
            for i in range(2):
                a(f's_add_u32 m0, s37, {base + reg + i*GS}')
                if i == 1 and mat == 0: a(f's_add_u32 s39, s46, {4*3584}')
                a(f'buffer_load_dwordx4 v4, s[{sr}:{sr+3}], s{39 if i else 46} offen lds')
    issue(0)
    issue(1)
    a('s_cmp_lg_u32 s31, 0')
    a('s_cbranch_scc1 K3_NOCS')
    a(f'''
    v_cmp_gt_u32 vcc, 28, v1
    v_lshlrev_b32 v14, 4, v1
    v_subrev_u32 v15, {28*16}, v14
    v_add_u32 v15, {F*4}, v15
    v_cndmask_b32 v15, v15, v14, vcc
    s_mul_i32 s41, s21, 448
    s_mov_b32 s42, -1
    s_mov_b32 s43, 0x00ffffff
    s_mov_b64 exec, s[42:43]
    s_mov_b32 m0, {CSL}
    s_nop 0
    buffer_load_dwordx4 v15, s[24:27], s41 offen lds
    s_mov_b64 exec, -1
    ''')
    a.label('K3_NOCS')
    issued = 2
    for k in range(NCH):
        allowed = (issued - 1 - k) * (4 if 'noh' in EXP else 2 if 'now' in EXP else 6)
        a(f's_waitcnt vmcnt({allowed})')
        if k in (0, 1, 2, 4, 7, 10, 13): stamp(a, [0,1,2,4,7,10,13].index(k) + 1)
        a('s_barrier')
        while issued < NCH and issued - k < INFL + 1 and issued - NST <= k - 1:
            issue(issued); issued += 1

def gen_k3():
    a = Asm()
    stamp_begin(a)
    a(f'''
    s_load_dwordx4 s[52:55], s[0:1], {KA['wg']}
    s_load_dwordx2 s[56:57], s[0:1], {KA['ws']}
    s_cmp_ge_u32 s2, {K3_GRID}
    s_cbranch_scc1 K3_END
    v_and_b32 v1, 63, v0
    v_lshrrev_b32 v2, 6, v0
    v_readfirstlane_b32 s30, v2
    s_and_b32 s22, s2, 7                 ; xcd
    s_lshr_b32 s23, s2, 3                ; j
    s_lshr_b32 s20, s22, 2
    s_lshl_b32 s20, s20, 3
    s_lshr_b32 s24, s23, 2               ; rr
    s_add_u32 s20, s20, s24              ; r
    s_and_b32 s21, s22, 3
    s_lshl_b32 s21, s21, 2
    s_and_b32 s25, s23, 3                ; cc
    s_add_u32 s21, s21, s25              ; c
    s_cmp_lt_u32 s30, 4
    s_cbranch_scc1 K3_COMPUTE
    s_mul_i32 s44, s24, 7
    s_lshr_b32 s44, s44, 2               ; 0..12
    s_mul_i32 s25, s25, 3
    s_add_u32 s44, s44, s25              ; <= 21
    s_cmp_ge_u32 s44, 14
    s_cselect_b32 s25, 14, 0
    s_sub_u32 s44, s44, s25              ; rotation
    s_sub_u32 s31, s30, 4                ; lw
    v_lshrrev_b32 v5, 4, v1              ; sub
    v_and_b32 v6, 15, v1
    v_mul_u32_u24 v4, 3584, v5
    v_lshl_add_u32 v4, v6, 4, v4         ; W voffset
    v_lshlrev_b32 v8, 12, v5
    v_lshl_add_u32 v8, v6, 4, v8         ; h voffset
    s_mul_i32 s32, s21, 224
    s_and_b32 s33, s21, 1
    s_lshl_b32 s33, s33, 5
    s_sub_u32 s32, s32, s33
    s_lshl_b32 s33, s31, 1
    s_mul_i32 s34, s33, {4*3584}
    s_add_u32 s32, s32, s34
    s_lshl_b32 s35, s33, 14
    s_lshl_b32 s36, s20, 8
    s_add_u32 s35, s35, s36
    s_mul_i32 s37, s33, {GS}
    s_mov_b32 s6, {D*F*2}
    s_mov_b32 s7, 0x20000
    s_mov_b32 s10, {D*F*2}
    s_mov_b32 s11, 0x20000
    s_mov_b32 s14, {ACT_BYTES}
    s_mov_b32 s15, 0x20000
    s_mov_b32 s26, {2*F*4}
    s_mov_b32 s27, 0x20000
    s_waitcnt lgkmcnt(0)
    s_mov_b32 s4, s52
    s_mov_b32 s5, s53
    s_mov_b32 s8, s54
    s_mov_b32 s9, s55
    s_add_u32 s12, s56, {HT_OFF}
    s_addc_u32 s13, s57, 0
    s_add_u32 s24, s56, {CS_OFF}
    s_addc_u32 s25, s57, 0
    ''')
    loader_wave(a)
    stamp_end(a, 4, 7, 'k3l', tid=256)
    a.label('K3_END')
    a('s_endpgm')
    a.label('K3_COMPUTE')
    a('s_waitcnt lgkmcnt(0)')
    stamp(a, 1)
    srd(a, 16, 56, 57, HID_BYTES, HID_OFF)
    srd(a, 48, 56, 57, L*4, RS_OFF)
    compute_wave(a)
    if STAMPS: a('s_waitcnt vmcnt(0)')
    stamp(a, 5)
    stamp_end(a, 2, 5, 'k3')
    a('s_endpgm')
    return kernel_text('k3_kernel', a, vgpr=256, sgpr=102)
```

```python
from common import *

K4_GRID = 224
K4_BLOCK = 256
RD = 7
HTL = 0
RING = 8192
K4_LDS = RING + 4 * RD * 4096
ACC = 16
AF = 80
BF = 96

def acc(a_, u): return ACC + 4 * (4*a_ + u)

def gen_k4():
    a = Asm()
    stamp_begin(a)
    a(f'''
    s_cmp_ge_u32 s2, {K4_GRID}
    s_cbranch_scc1 K4_END
    s_load_dwordx4 s[44:47], s[0:1], {KA['wd']}
    s_load_dwordx2 s[48:49], s[0:1], {KA['ws']}
    v_and_b32 v1, 63, v0
    v_lshrrev_b32 v2, 6, v0
    v_readfirstlane_b32 s30, v2          ; wave
    s_and_b32 s22, s2, 7
    s_lshr_b32 s23, s2, 3
    s_lshl_b32 s20, s22, 2
    s_and_b32 s24, s23, 3
    s_add_u32 s20, s20, s24
    s_lshr_b32 s21, s23, 2
    s_waitcnt lgkmcnt(0)
    ''')
    stamp(a, 1)
    srd(a, 4, 44, 45, F*D*2)
    srd(a, 8, 46, 47, ACT_BYTES)
    srd(a, 12, 48, 49, ACT_BYTES, HT_OFF)
    srd(a, 16, 48, 49, HID_BYTES, HID_OFF)
    srd(a, 52, 48, 49, L*4, CS_OFF + 0x4000)
    a('''
    v_and_b32 v14, 15, v1
    s_lshl_b32 s36, s20, 6
    s_lshl_b32 s37, s30, 4
    s_add_u32 s36, s36, s37
    s_lshl_b32 s36, s36, 2
    v_lshlrev_b32 v14, 2, v14
    buffer_load_dword v14, v14, s[52:55], s36 offen
    ''')
    a(f'''
    v_lshrrev_b32 v3, 3, v1              ; sub
    v_and_b32 v4, 7, v1
    v_bfe_u32 v5, v1, 4, 2               ; (sub>>1)&3
    v_lshlrev_b32 v5, 1, v5
    v_xor_b32 v4, v4, v5
    v_mul_u32_u24 v6, 896, v3
    v_lshl_add_u32 v6, v4, 4, v6
    v_lshlrev_b32 v7, 4, v1
    s_mul_i32 s31, s30, {14*32*896}
    s_lshl_b32 s32, s21, 7               ; ct*128 B
    s_add_u32 s31, s31, s32
    s_lshl_b32 s33, s20, 2
    s_mul_i32 s33, s33, 57344
    s_mul_i32 s34, s30, {14*1024}
    s_add_u32 s33, s33, s34
    s_mul_i32 s35, s30, {RD*4096}
    s_add_u32 s35, s35, {RING}
    ''')
    def issue(i):
        sl = i % RD
        for k in range(4):
            a(f's_add_u32 m0, s35, {sl*4096 + k*1024}')
            a(f's_add_u32 s36, s31, {(32*i + 8*k)*896}')
            a(f'buffer_load_dwordx4 v6, s[4:7], s36 offen lds')
        for u in range(4):
            a(f's_add_u32 s36, s33, {u*57344 + i*1024}')
            r = BF + 16*sl + 4*u
            a(f'buffer_load_dwordx4 v[{r}:{r+3}], v7, s[16:19], s36 offen')
    a(f'''
    v_lshlrev_b32 v8, 12, v3             ; sub*4096
    v_and_b32 v9, 7, v1
    v_lshl_add_u32 v8, v9, 4, v8
    s_lshl_b32 s37, s21, 6               ; d0
    s_lshl_b32 s38, s30, 4
    s_add_u32 s37, s37, s38              ; d row
    s_lshl_b32 s37, s37, 12
    s_lshl_b32 s38, s20, 7               ; rt*64*2
    s_add_u32 s37, s37, s38
    s_lshl_b32 s39, s30, 11              ; LDS: 16w*128
    s_add_u32 m0, s39, {HTL}
    s_nop 0
    buffer_load_dwordx4 v8, s[12:15], s37 offen lds
    s_add_u32 m0, s39, {HTL + 1024}
    s_add_u32 s37, s37, {8*4096}
    buffer_load_dwordx4 v8, s[12:15], s37 offen lds
    ''')
    for i in range(RD): issue(i)
    a(f'''
    v_lshrrev_b32 v2, 4, v1              ; g
    v_bfe_u32 v3, v1, 2, 2               ; r
    v_and_b32 v4, 3, v1                  ; c
    v_lshrrev_b32 v5, 1, v2
    v_lshlrev_b32 v5, 4, v5
    v_and_b32 v8, 1, v2
    v_lshl_add_u32 v5, v8, 2, v5
    v_add_u32 v5, v5, v3
    v_bfe_u32 v9, v5, 1, 2               ; (row>>1)&3
    v_lshlrev_b32 v5, 7, v5
    v_lshl_add_u32 v5, v4, 3, v5
    v_add_u32 v5, s35, v5
    ''')
    for a_ in range(4):
        a(f'v_xor_b32 v8, {a_}, v9')
        a(f'v_lshl_add_u32 v{10+a_}, v8, 5, v5')
    issued = RD
    for i in range(14):
        a(f's_waitcnt vmcnt({8*(issued - 1 - i)})')
        if i == 0: stamp(a, 2)
        sl = i % RD
        for a_ in range(4):
            for rho in range(2):
                r = AF + 4*a_ + 2*rho
                a(f'ds_read_b64_tr_b16 v[{r}:{r+1}], v{10+a_} offset:{sl*4096 + rho*1024}')
        for a_ in range(4):
            a(f's_waitcnt lgkmcnt({6 - 2*a_})')
            for u in range(4):
                c = acc(a_, u)
                b = BF + 16*sl + 4*u
                src = '0' if i == 0 else f'v[{c}:{c+3}]'
                a(f'v_mfma_f32_16x16x32_bf16 v[{c}:{c+3}], v[{AF+4*a_}:{AF+4*a_+3}], v[{b}:{b+3}], {src}')
        if i + RD < 14:
            issue(i + RD); issued += 1
    stamp(a, 3)
    a('s_barrier')
    a(f'''
    s_lshl_b32 s36, s30, 14
    v_add_u32 v8, s36, v7
    v_add_u32 v8, {RING}, v8
    ''')
    for u in range(4):
        a(f's_cmp_eq_u32 s30, {u}')
        a(f's_cbranch_scc1 K4_W{u}')
        for a_ in range(4):
            c = acc(a_, u)
            a(f'ds_write_b128 v8, v[{c}:{c+3}] offset:{(u*4 + a_)*1024}')
        a.label(f'K4_W{u}')
    a('s_waitcnt lgkmcnt(0)')
    a('s_barrier')
    for u in range(4):
        a(f's_cmp_lg_u32 s30, {u}')
        a(f's_cbranch_scc1 K4_M{u}')
        for a_ in range(4):
            c = acc(a_, u)
            for i in range(4):
                a(f'v_mov_b32 v{96+4*a_+i}, v{c+i}')
        a.label(f'K4_M{u}')
    a(f'''
    s_lshl_b32 s37, s30, 12              ; u*4 KB
    v_add_u32 v8, s37, v7
    v_add_u32 v8, {RING}, v8
    ''')
    for k in range(1, 4):
        a(f's_add_u32 s36, s30, {k}')
        a('s_and_b32 s36, s36, 3')
        a('s_lshl_b32 s36, s36, 14')
        a(f'v_add_u32 v9, s36, v8')
        for a_ in range(4):
            r = 112 + 16*(k-1) + 4*a_
            a(f'ds_read_b128 v[{r}:{r+3}], v9 offset:{a_*1024}')
    a(f'''
    v_lshl_add_u32 v5, v2, 2, v3         ; 4q + r
    v_lshlrev_b32 v5, 7, v5
    v_lshl_add_u32 v5, v4, 3, v5
    s_lshl_b32 s36, s30, 5
    v_add_u32 v5, s36, v5
    ''')
    for a_ in range(4):
        a(f'ds_read_b64_tr_b16 v[{160+2*a_}:{161+2*a_}], v5 offset:{HTL + a_*2048}')
    a(f'''
    v_and_b32 v8, 15, v1
    v_mul_u32_u24 v8, 896, v8
    v_lshl_add_u32 v8, v2, 3, v8
    s_lshl_b32 s36, s20, 6
    s_lshl_b32 s37, s30, 4
    s_add_u32 s36, s36, s37
    s_mul_i32 s36, s36, 896
    s_lshl_b32 s37, s21, 7
    s_add_u32 s36, s36, s37
    s_waitcnt lgkmcnt(0)
    ''')
    for a_ in range(4):
        c = 96 + 4*a_
        for k in range(3):
            r = 112 + 16*k + 4*a_
            a(f'v_pk_add_f32 v[{c}:{c+1}], v[{c}:{c+1}], v[{r}:{r+1}]')
            a(f'v_pk_add_f32 v[{c+2}:{c+3}], v[{c+2}:{c+3}], v[{r+2}:{r+3}]')
        a(f'v_pk_mul_f32 v[{c}:{c+1}], v[{c}:{c+1}], v[14:15] op_sel_hi:[1,0]')
        a(f'v_pk_mul_f32 v[{c+2}:{c+3}], v[{c+2}:{c+3}], v[14:15] op_sel_hi:[1,0]')
        a(f'v_cvt_pk_bf16_f32 v{c}, v{c}, v{c+1}')
        a(f'v_cvt_pk_bf16_f32 v{c+2}, v{c+2}, v{c+3}')
        a(f'v_and_b32 v{c+1}, 0xffff0000, v{c}')
        a(f'v_lshlrev_b32 v{c}, 16, v{c}')
        a(f'v_and_b32 v{c+3}, 0xffff0000, v{c+2}')
        a(f'v_lshlrev_b32 v{c+2}, 16, v{c+2}')
        h = 160 + 2*a_
        a(f'v_lshlrev_b32 v170, 16, v{h}')
        a(f'v_and_b32 v171, 0xffff0000, v{h}')
        a(f'v_lshlrev_b32 v172, 16, v{h+1}')
        a(f'v_and_b32 v173, 0xffff0000, v{h+1}')
        a(f'v_pk_add_f32 v[{c}:{c+1}], v[{c}:{c+1}], v[170:171]')
        a(f'v_pk_add_f32 v[{c+2}:{c+3}], v[{c+2}:{c+3}], v[172:173]')
        a(f'v_cvt_pk_bf16_f32 v{c}, v{c}, v{c+1}')
        a(f'v_cvt_pk_bf16_f32 v{c+1}, v{c+2}, v{c+3}')
        a(f'buffer_store_dwordx2 v[{c}:{c+1}], v8, s[8:11], s36 offen offset:{32*a_}')
    if STAMPS: a('s_waitcnt vmcnt(0)')
    stamp(a, 4)
    stamp_end(a, 3, 4, 'k4')
    a.label('K4_END')
    a('s_endpgm')
    return kernel_text('k4_kernel', a, vgpr=208, sgpr=102)
```

```python
import struct, os, math
from asmlib import *

def fhex(x):
    return '0x%08x' % struct.unpack('<I', struct.pack('<f', x))[0]

L = 2048; D = 448; N = 256; F = 1792
KA = dict(x=0, a_re=8, a_im=16, b_re=24, b_im=32, c_re=40, c_im=48, log_dt=56, dskip=64, bx=72,
          wg=80, wu=88, wd=96, out=104, dbg=112, ws=120)
FL1, FL2, FL3, EPOCH = 0x0000, 0x0400, 0x0800, 0x1000
FLG_BYTES = 0x2000
UX_OFF = 0x100000
UX_BYTES = D * 8192
HT_OFF = 0x500000
CS_OFF = 0x700000
RS_OFF = 0x704000
HID_OFF = 0x800000
ACT_BYTES = L * D * 2
HID_BYTES = L * F * 2
STAMP_OFF = 0x3000000

def srd(a, s, lo, hi, nbytes, add=0):
    if add:
        a(f's_add_u32 s{s}, s{lo}, {add}')
        a(f's_addc_u32 s{s+1}, s{hi}, 0')
    else:
        a(f's_mov_b32 s{s}, s{lo}')
        a(f's_mov_b32 s{s+1}, s{hi}')
    a(f's_mov_b32 s{s+2}, {nbytes}')
    a(f's_mov_b32 s{s+3}, 0x20000')

def kernel_text(name, body, vgpr, sgpr=102):
    lines, n = fix_hazards(body.lines)
    acc = ((vgpr + 3) // 4) * 4
    hdr = f'''.text
.globl {name}
.p2align 8
.type {name},@function
{name}:
'''
    tail = f'''
.section .rodata,"a"
.p2align 6
.amdhsa_kernel {name}
  .amdhsa_next_free_vgpr {vgpr}
  .amdhsa_next_free_sgpr {sgpr}
  .amdhsa_accum_offset {acc}
  .amdhsa_group_segment_fixed_size 0
  .amdhsa_kernarg_size 128
  .amdhsa_user_sgpr_count 2
  .amdhsa_user_sgpr_kernarg_segment_ptr 1
  .amdhsa_system_sgpr_workgroup_id_x 1
.end_amdhsa_kernel
'''
    return hdr + '\n'.join(lines) + '\n' + tail

def cmul_l(c, x, y, t):
    return [f'v_pk_mul_f32 v[{t}:{t+1}], v[{x}:{x+1}], v[{y}:{y+1}] op_sel:[0,0] op_sel_hi:[1,0]',
            f'v_pk_fma_f32 v[{c}:{c+1}], v[{x}:{x+1}], v[{y}:{y+1}], v[{t}:{t+1}] op_sel:[1,1,0] op_sel_hi:[0,1,1] neg_lo:[1,0,0]']

def lines_of(s):
    return [x.strip() for x in s.strip().split('\n') if x.strip() and not x.strip().startswith(';')]

def merge(*streams, ratio=None):
    streams = [list(s) for s in streams if s]
    out = []
    tot = [len(s) for s in streams]
    pos = [0] * len(streams)
    n = sum(tot)
    for _ in range(n):
        best = min((i for i in range(len(streams)) if pos[i] < tot[i]), key=lambda i: (pos[i] + 0.5) / tot[i])
        out.append(streams[best][pos[best]])
        pos[best] += 1
    return out

STAMPS = os.environ.get('STAMPS', '0') == '1'
ST0 = 76
def stamp_begin(a):
    if not STAMPS: return
    a(f's_memrealtime s[{ST0}:{ST0+1}]')
    a(f's_memtime s[{ST0+2}:{ST0+3}]')
def stamp(a, i):
    if not STAMPS: return
    assert 1 <= i <= 10
    a(f's_memtime s[{ST0+2+2*i}:{ST0+3+2*i}]')
def stamp_end(a, kidx, tag, tid):
    if not STAMPS: return
    a(f's_memrealtime s[100:101]')
    a('s_waitcnt lgkmcnt(0)')
    srd(a, 60, 4, 5, 1 << 20, STAMP_OFF + kidx * (1 << 17))
    a('s_mov_b64 exec, -1')
    a(f'v_mov_b32 v1, {tid}')
    a('v_cmp_eq_u32 vcc, v1, v0')
    a('s_and_saveexec_b64 s[64:65], vcc')
    a(f's_cbranch_execz STAMP_DONE_{tag}')
    a('s_lshl_b32 s66, s2, 6')
    a('v_mov_b32 v1, s66')
    a(f'v_mov_b32 v2, s{ST0}')
    a('buffer_store_dword v2, v1, s[60:63], 0 offen')
    for i in range(1, 11):
        a(f's_sub_u32 s67, s{ST0+2+2*i}, s{ST0+2}')
        a('v_mov_b32 v2, s67')
        a(f'buffer_store_dword v2, v1, s[60:63], 0 offen offset:{4*i}')
    a(f'v_mov_b32 v2, s100')
    a(f'buffer_store_dword v2, v1, s[60:63], 0 offen offset:60')
    a.label(f'STAMP_DONE_{tag}')
    a('s_mov_b64 exec, -1')
```

```python
from common import *

SK = 848
STGSZ = 64 * SK
LNT = 2 * STGSZ
LNP = 1856
UXL = LNT + 8 * LNP
UXCH = 8704
CPY = 4160
KCCH = 8 * CPY
PT0 = 2 * KCCH
PTCH = 21504
TP = 288
CNT = 163840 - 512
ROWS_F = list(range(8)) + [256, 258, 260, 262] + [512, 516, 768, 772] + [1024, 1280, 1536, 1792] + [2048]
ER = 21

def tidx(l): return (l & 7) * TP + (l >> 3)
ZSLOT = 7 * TP + 287

DPP = ['row_shr:1 row_mask:0xf bank_mask:0xf bound_ctrl:0', 'row_shr:2 row_mask:0xf bank_mask:0xf bound_ctrl:0',
       'row_shr:4 row_mask:0xf bank_mask:0xf bound_ctrl:0', 'row_shr:8 row_mask:0xf bank_mask:0xf bound_ctrl:0',
       'row_bcast:15 row_mask:0xa bank_mask:0xf', 'row_bcast:31 row_mask:0xc bank_mask:0xf']

def prologue(a):
    a(f'''
    s_load_dwordx2 s[4:5], s[0:1], {KA['ws']}
    s_load_dwordx2 s[12:13], s[0:1], {KA['x']}
    s_load_dwordx2 s[40:41], s[0:1], {KA['a_re']}
    s_load_dwordx2 s[44:45], s[0:1], {KA['a_im']}
    s_load_dwordx2 s[48:49], s[0:1], {KA['b_re']}
    s_load_dwordx2 s[52:53], s[0:1], {KA['b_im']}
    s_load_dwordx2 s[56:57], s[0:1], {KA['c_re']}
    s_load_dwordx2 s[60:61], s[0:1], {KA['c_im']}
    s_load_dwordx2 s[64:65], s[0:1], {KA['log_dt']}
    s_cmp_ge_u32 s2, 256
    s_cbranch_scc1 M_END
    v_and_b32 v1, 63, v0
    v_lshrrev_b32 v2, 6, v0
    v_readfirstlane_b32 s30, v2          ; wave
    s_and_b32 s21, s2, 7
    s_lshl_b32 s21, s21, 5
    s_lshr_b32 s22, s2, 3
    s_add_u32 s21, s21, s22
    s_lshl_b32 s22, s21, 3
    s_add_u32 s22, s22, s30
    s_mul_i32 s22, s22, 896
    v_lshlrev_b32 v46, 4, v1
    v_cmp_gt_u32 vcc, 56, v1
    v_mov_b32 v4, 0x40000000
    v_cndmask_b32 v46, v4, v46, vcc
    v_mov_b32 v44, 0
    v_mov_b32 v4, 1.0
    v_cndmask_b32 v44, v44, v4, vcc
    s_lshr_b32 s31, s30, 2
    s_and_b32 s32, s30, 3                ; wc
    s_lshl_b32 s23, s2, 1
    s_add_u32 s23, s23, s31              ; channel d
    s_lshl_b32 s24, s23, 9               ; d*512
    s_lshl_b32 s25, s23, 1
    v_mov_b32 v54, s25
    v_and_b32 v5, 255, v0                ; tau
    v_lshlrev_b32 v6, 1, v5
    s_mov_b32 s14, {ACT_BYTES}
    s_mov_b32 s15, 0x20000
    ''')
    for s in (40, 44, 48, 52, 56, 60):
        a(f's_mov_b32 s{s+2}, {D*N*2}')
        a(f's_mov_b32 s{s+3}, 0x20000')
    a(f's_mov_b32 s66, {D*2}')
    a('s_mov_b32 s67, 0x20000')
    a('s_waitcnt lgkmcnt(0)')
    stamp(a, 1)
    a(f's_load_dword s3, s[4:5], {EPOCH}')
    a('buffer_load_dwordx4 v[8:11], v46, s[12:15], s22 offen')
    for i, s in enumerate((40, 44, 48, 52, 56, 60)):
        a(f'buffer_load_ushort v{48+i}, v6, s[{s}:{s+3}], s24 offen')
    a('buffer_load_ushort v54, v54, s[64:67], 0 offen')
    srd(a, 8, 4, 5, FLG_BYTES)
    srd(a, 68, 4, 5, UX_BYTES, UX_OFF)
    a(f'''
    s_getpc_b64 s[16:17]
    PF_M:
    s_add_u32 s16, s16, (mega_kernel-PF_M)
    s_addc_u32 s17, s17, -1
    s_lshr_b32 s18, s2, 3
    s_mul_i32 s18, s18, 10
    v_add_u32 v7, s18, v0
    v_lshlrev_b32 v7, 7, v7
    v_min_u32 v7, (M_CODE_END-mega_kernel-4), v7
    v_cmp_gt_u32 vcc, 10, v0
    s_and_saveexec_b64 s[18:19], vcc
    s_cbranch_execz PF_M_DONE
    global_load_dword v255, v7, s[16:17]
    PF_M_DONE:
    s_mov_b64 exec, s[18:19]
    ''')

def precompute(a):
    a('v_lshlrev_b32 v168, 3, v5')
    a('v_sub_u32 v168, 2047, v168')
    for j in range(15):
        a(f'v_subrev_u32 v{169+j}, {j}, v168')
    for j in range(15):
        src = 169 + j
        if j >= 8:
            a(f'v_max_i32 v{184+j}, 0, v{src}')
            src = 184 + j
        a(f'v_cvt_f32_u32 v{200+j}, v{src}')
    for j in range(0, 14, 2):
        a(f'v_cvt_pk_bf16_f32 v{216+j//2}, v{200+j}, v{201+j}')
    a('v_cvt_pk_bf16_f32 v223, v214, v214')
    for j in range(0, 14, 2):
        a(f'v_lshlrev_b32 v{200+j}, 16, v{216+j//2}')
        a(f'v_and_b32 v{201+j}, 0xffff0000, v{216+j//2}')
    a('v_lshlrev_b32 v214, 16, v223')
    for j in range(15):
        a(f'v_cvt_u32_f32 v{200+j}, v{200+j}')
    a(f's_mul_i32 s26, s31, {PTCH}')
    a(f's_add_u32 s26, s26, {PT0 + 12288}')
    for j in range(15):
        a(f'v_and_b32 v{216}, 7, v{200+j}')
        a(f'v_mul_u32_u24 v{216}, {4*TP}, v{216}')
        a(f'v_lshrrev_b32 v{217}, 3, v{200+j}')
        a(f'v_lshl_add_u32 v{216}, v{217}, 2, v{216}')
        if j >= 8:
            a(f'v_cmp_gt_i32 vcc, 0, v{169+j}')
            a(f'v_mov_b32 v217, {4*ZSLOT}')
            a(f'v_cndmask_b32 v216, v216, v217, vcc')
        a(f'v_add_u32 v{152+j}, s26, v216')
    a(f'''
    s_mul_i32 s27, s31, {STGSZ}
    v_lshrrev_b32 v3, 2, v5
    v_mul_u32_u24 v3, {SK}, v3
    v_and_b32 v4, 3, v5
    v_lshl_add_u32 v3, v4, 2, v3
    v_add_u32 v3, s27, v3
    v_and_b32 v224, 31, v1               ; i / j
    v_lshrrev_b32 v225, 5, v1            ; g / half
    s_lshl_b32 s28, s32, 4
    v_add_u32 v226, s28, v225
    v_mul_u32_u24 v226, {SK}, v226
    v_lshl_add_u32 v226, v224, 4, v226
    v_add_u32 v226, s27, v226
    s_mul_i32 s28, s31, {PTCH}
    s_add_u32 s28, s28, {PT0}
    v_lshlrev_b32 v229, 4, v1
    s_mul_i32 s29, s32, 3072
    s_add_u32 s29, s29, s28
    v_add_u32 v227, s29, v229
    s_lshl_b32 s29, s32, 10
    s_add_u32 s29, s29, s28
    v_add_u32 v228, s29, v229
    v_min_u32 v45, 56, v1
    v_lshlrev_b32 v45, 5, v45
    s_mul_i32 s29, s30, {LNP}
    s_add_u32 s29, s29, {LNT}
    v_add_u32 v45, s29, v45
    v_lshrrev_b32 v230, 4, v1
    v_bfe_u32 v231, v1, 2, 2
    v_and_b32 v232, 3, v1
    v_mul_u32_u24 v231, {LNP}, v231
    v_lshlrev_b32 v230, 5, v230
    v_lshl_add_u32 v230, v232, 3, v230
    v_add_u32 v230, v230, v231
    s_lshl_b32 s29, s30, 7
    s_add_u32 s29, s29, {LNT}
    v_add_u32 v230, s29, v230
    v_lshrrev_b32 v231, 1, v1
    v_lshlrev_b32 v231, 13, v231
    v_and_b32 v232, 1, v1
    v_lshl_add_u32 v231, v232, 4, v231
    s_lshl_b32 s33, s30, 18              ; cg*32*8192
    s_lshl_b32 s34, s21, 5               ; rho*32
    s_add_u32 s33, s33, s34
    ''')
    a(f'''
    v_mov_b32 v232, 0
    v_mov_b32 v233, 0
    v_mov_b32 v234, 0
    v_mov_b32 v235, 0
    v_mov_b32 v236, {CNT}
    v_and_b32 v237, 31, v1
    v_lshlrev_b32 v237, 4, v237
    s_mul_i32 s29, s31, {UXCH}
    s_add_u32 s29, s29, {UXL}
    v_add_u32 v237, s29, v237
    ds_write_b128 v236, v[232:235]
    ds_write_b128 v237, v[232:235]
    ''')

def ln_stream():
    s = []
    for i in range(4):
        s.append(f'v_lshlrev_b32 v{12+2*i}, 16, v{8+i}')
        s.append(f'v_and_b32 v{13+2*i}, 0xffff0000, v{8+i}')
    s += ['v_pk_add_f32 v[20:21], v[12:13], v[14:15]', 'v_pk_add_f32 v[24:25], v[16:17], v[18:19]',
          'v_pk_add_f32 v[20:21], v[20:21], v[24:25]', 'v_add_f32 v22, v20, v21']
    for st in DPP: s.append(f'v_add_f32_dpp v22, v22, v22 {st}')
    s.append(f'v_mul_f32 v22, {fhex(1.0/448)}, v22')
    s.append('v_readlane_b32 s36, v22, 63')
    for i in range(4):
        s.append(f'v_pk_add_f32 v[{24+2*i}:{25+2*i}], v[{12+2*i}:{13+2*i}], s[36:37] op_sel_hi:[1,0] neg_lo:[0,1] neg_hi:[0,1]')
    s.append('v_pk_mul_f32 v[20:21], v[24:25], v[24:25]')
    for i in range(1, 4):
        s.append(f'v_pk_fma_f32 v[20:21], v[{24+2*i}:{25+2*i}], v[{24+2*i}:{25+2*i}], v[20:21]')
    s += ['v_add_f32 v23, v20, v21', 'v_mul_f32 v23, v23, v44']
    for st in DPP: s.append(f'v_add_f32_dpp v23, v23, v23 {st}')
    s += [f'v_mul_f32 v23, {fhex(1.0/448)}, v23',
          'v_cvt_pk_bf16_f32 v20, v22, v23',
          'v_lshlrev_b32 v22, 16, v20', 'v_and_b32 v23, 0xffff0000, v20',
          f'v_add_f32 v23, {fhex(1e-5)}, v23',
          'v_cvt_pk_bf16_f32 v23, v23, v23', 'v_and_b32 v23, 0xffff0000, v23',
          'v_sqrt_f32 v23, v23',
          'v_cvt_pk_bf16_f32 v23, v23, v23', 'v_and_b32 v23, 0xffff0000, v23',
          'v_rcp_f32 v23, v23',
          'v_readlane_b32 s36, v22, 63', 'v_readlane_b32 s38, v23, 63']
    for i in range(4):
        s.append(f'v_pk_add_f32 v[{24+2*i}:{25+2*i}], v[{12+2*i}:{13+2*i}], s[36:37] op_sel_hi:[1,0] neg_lo:[0,1] neg_hi:[0,1]')
    for i in range(4):
        s.append(f'v_cvt_pk_bf16_f32 v{32+i}, v{24+2*i}, v{25+2*i}')
    for i in range(4):
        s.append(f'v_lshlrev_b32 v{24+2*i}, 16, v{32+i}')
        s.append(f'v_and_b32 v{25+2*i}, 0xffff0000, v{32+i}')
    for i in range(4):
        s.append(f'v_pk_mul_f32 v[{24+2*i}:{25+2*i}], v[{24+2*i}:{25+2*i}], s[38:39] op_sel_hi:[1,0]')
    for i in range(4):
        s.append(f'v_cvt_pk_bf16_f32 v{32+i}, v{24+2*i}, v{25+2*i}')
    for i in range(4):
        s.append(f'v_perm_b32 v{36+2*i}, v{8+i}, v{32+i}, s74')
        s.append(f'v_perm_b32 v{37+2*i}, v{8+i}, v{32+i}, s75')
    return s

ARE, AIM, BRE, BIM, CRE, CIM, LDT = range(48, 55)
Wr, p1, q, PP = 60, 64, 66, 68
q2, Ee, Eo, Fa, p2, p4, G, H, P2, t1, t2, t3 = 76, 78, 80, 82, 84, 86, 88, 90, 92, 94, 96, 98

def kg_setup_stream():
    s = []
    for i in range(7): s.append(f'v_lshlrev_b32 v{48+i}, 16, v{48+i}')
    l2e = fhex(math.log2(math.e))
    s += [f'v_mul_f32 v{LDT}, {l2e}, v{LDT}', f'v_exp_f32 v{LDT}, v{LDT}',
          f'v_cvt_pk_bf16_f32 v{LDT}, v{LDT}, v{LDT}', f'v_and_b32 v{LDT}, 0xffff0000, v{LDT}',
          f'v_mul_f32 v{ARE}, v{LDT}, v{ARE}', f'v_mul_f32 v{AIM}, v{LDT}, v{AIM}',
          f'v_mul_f32 v56, v{LDT}, v{BRE}', f'v_mul_f32 v57, v{LDT}, v{BIM}',
          f'v_mul_f32 v{ARE}, {l2e}, v{ARE}', f'v_mul_f32 v{AIM}, {fhex(1/(2*math.pi))}, v{AIM}',
          f'v_mov_b32 v58, v{CRE}', f'v_mov_b32 v59, v{CIM}']
    s += cmul_l(Wr, 58, 56, 62)
    def cexp(dst, r, t):
        o = []
        if r == 1:
            o += [f'v_exp_f32 v{t}, v{ARE}', f'v_fract_f32 v{t+1}, v{AIM}']
        else:
            o += [f'v_mul_f32 v{t}, {fhex(float(r))}, v{ARE}', f'v_mul_f32 v{t+1}, {fhex(float(r))}, v{AIM}',
                  f'v_exp_f32 v{t}, v{t}', f'v_fract_f32 v{t+1}, v{t+1}']
        o += [f'v_cos_f32 v{dst}, v{t+1}', f'v_sin_f32 v{dst+1}, v{t+1}',
              f'v_pk_mul_f32 v[{dst}:{dst+1}], v[{dst}:{dst+1}], v[{t}:{t+1}] op_sel_hi:[1,0]']
        return o
    s += merge(cexp(p1, 1, 70), cexp(q, 8, 72), cexp(PP, 256, 74))
    return s

def kg_main_stream():
    out = []
    pend = []
    cnt = [0]
    wt = [100, 101, 102, 103]
    def put(row, pair, isF):
        w = wt[cnt[0] % 4]; cnt[0] += 1
        o = [f'v_cvt_pk_bf16_f32 v{w}, v{pair}, {"-" if isF else ""}v{pair+1}']
        pend.append((row, w))
        if len(pend) == 2:
            (r0, w0), (r1, w1) = pend
            o.append(f'ds_write2_b32 v3, v{w0}, v{w1} offset0:{4*r0} offset1:{4*r1}')
            pend.clear()
        return o
    def op(c, x, y, t, row=None, isF=False):
        m, f = cmul_l(c, x, y, t)
        return (m, f, row, c, isF)
    pre = [op(q2, q, q, t1), op(p2, p1, p1, t2), op(P2, PP, PP, t3)]
    chainE_o = [op(Eo, q, q2, t1, ER+3)] + [op(Eo, Eo, q2, t1, ER+j) for j in range(5, 32, 2)]
    chainE_e = [op(Ee, q2, q2, t2, ER+4)] + [op(Ee, Ee, q2, t2, ER+j) for j in range(6, 32, 2)]
    chainF = [op(Fa, Wr, p1, t3, 1, True), op(p4, p2, p2, t3), op(G, Wr, PP, t3, 8, True), op(H, Wr, P2, t3, 12, True)]
    chainF += [op(Fa, Fa, p1, t3, b, True) for b in range(2, 8)]
    chainF += [op(Fa, H, p4, t3, 13, True)]
    chainF += [op(G, G, p2, t3, b, True) for b in (9, 10, 11)]
    chainF += [op(G, H, P2, t3, 16, True), op(H, H, PP, t3, 14, True), op(Fa, H, p4, t3, 15, True)]
    chainF += [op(G, G, PP, t3, b, True) for b in (17, 18, 19, 20)]
    out += [f'v_mov_b32 v{Ee}, 1.0', f'v_mov_b32 v{Ee+1}, 0']
    out += [o[0] for o in pre]
    out += put(ER+0, Ee, False) + put(ER+1, q, False)
    out += [o[1] for o in pre]
    out += put(0, Wr, True) + put(ER+2, q2, False)
    chains = [chainE_o, chainE_e, chainF]
    idx = [0, 0, 0]
    while any(idx[i] < len(chains[i]) for i in range(3)):
        grp = []
        for i in range(3):
            if idx[i] < len(chains[i]):
                grp.append(chains[i][idx[i]]); idx[i] += 1
        out += [g[0] for g in grp]
        out += [g[1] for g in grp]
        for g in grp:
            if g[2] is not None:
                out += put(g[2], g[3], g[4])
    if pend:
        (r0, w0), = pend
        out.append(f'ds_write_b32 v3, v{w0} offset:{16*r0}')
        pend.clear()
    return out

def signal(a, cnt_off, nwaves, flag_off_code, tag):
    a(f'''
    s_waitcnt vmcnt(0)
    s_mov_b64 exec, 1
    v_mov_b32 v236, {CNT + cnt_off}
    v_mov_b32 v237, 1
    ds_add_rtn_u32 v237, v236, v237
    s_waitcnt lgkmcnt(0)
    v_readfirstlane_b32 s28, v237
    s_cmp_lg_u32 s28, {nwaves - 1}
    s_cbranch_scc1 SIG_{tag}
    {flag_off_code}
    v_mov_b32 v236, 0
    v_mov_b32 v237, s3
    buffer_store_dword v237, v236, s[8:11], s29 offen sc1
    SIG_{tag}:
    s_mov_b64 exec, -1
    ''')

def _so(soff):
    return f'0 offen offset:{soff}' if isinstance(soff, int) else f'{soff} offen'

def poll_issue(a, vreg, voff, soff):
    a(f'buffer_load_dwordx4 v[{vreg}:{vreg+3}], v{voff}, s[8:11], {_so(soff)} sc1')

def poll_check(a, vreg, voff, soff, tag, tmp):
    a(f's_mov_b32 s28, 0')
    a.label(f'POLL_{tag}')
    a(f'''
    s_waitcnt vmcnt(0)
    v_xor_b32 v{tmp}, s3, v{vreg}
    v_xor_b32 v{tmp+1}, s3, v{vreg+1}
    v_xor_b32 v{tmp+2}, s3, v{vreg+2}
    v_xor_b32 v{tmp+3}, s3, v{vreg+3}
    v_or3_b32 v{tmp}, v{tmp}, v{tmp+1}, v{tmp+2}
    v_or_b32 v{tmp}, v{tmp}, v{tmp+3}
    v_cmp_ne_u32 vcc, 0, v{tmp}
    s_cbranch_vccz POLLD_{tag}
    s_add_u32 s28, s28, 1
    s_cmp_gt_u32 s28, 200000
    s_cbranch_scc1 POLLD_{tag}
    buffer_load_dwordx4 v[{vreg}:{vreg+3}], v{voff}, s[8:11], {_so(soff)} sc1
    s_branch POLL_{tag}
    ''')
    a.label(f'POLLD_{tag}')

def phase1(a):
    prologue(a)
    precompute(a)
    a('s_mov_b32 s74, 0x05040100')
    a('s_mov_b32 s75, 0x07060302')
    a('s_waitcnt vmcnt(0) lgkmcnt(0)')
    a('s_add_u32 s3, s3, 1')
    stamp(a, 2)
    for x in merge(ln_stream(), kg_setup_stream()): a(x)
    a('ds_write_b128 v45, v[36:39]')
    a('ds_write_b128 v45, v[40:43] offset:16')
    a('s_waitcnt lgkmcnt(0)')
    a('s_barrier')
    a(f'ds_read_b64_tr_b16 v[8:9], v230')
    a(f'ds_read_b64_tr_b16 v[10:11], v230 offset:{4*LNP}')
    a(f'ds_read_b64_tr_b16 v[12:13], v230 offset:1024')
    a(f'ds_read_b64_tr_b16 v[14:15], v230 offset:{4*LNP + 1024}')
    main = kg_main_stream()
    n1 = 12
    for x in main[:n1]: a(x)
    a('s_waitcnt lgkmcnt(0)')
    a('buffer_store_dwordx4 v[8:11], v231, s[68:71], s33 offen sc1')
    a('s_cmp_ge_u32 s30, 6')
    a('s_cbranch_scc1 P1_NO2')
    a(f's_add_u32 s34, s33, {8 << 18}')
    a('buffer_store_dwordx4 v[12:15], v231, s[68:71], s34 offen sc1')
    a.label('P1_NO2')
    stamp(a, 3)
    n2 = n1 + int(len(main) * 0.42)
    for x in main[n1:n2]: a(x)
    signal(a, 0, 8, 's_lshl_b32 s29, s2, 2', 'S1')
    for x in main[n2:]: a(x)
    stamp(a, 4)
    a('v_lshlrev_b32 v229, 4, v1')
    poll_issue(a, 16, 229, FL1)
    ACC = 104
    a('s_waitcnt lgkmcnt(0)')
    def rd(s):
        b = 120 + 8*(s % 4)
        a(f'ds_read_b128 v[{b}:{b+3}], v226 offset:{2*s*SK}')
        a(f'ds_read_b128 v[{b+4}:{b+7}], v226 offset:{2*s*SK + ER*16}')
    for s in range(4): rd(s)
    for s in range(8):
        b = 120 + 8*(s % 4)
        a(f's_waitcnt lgkmcnt({min(6, 2*(7-s))})')
        src = '0' if s == 0 else f'v[{ACC}:{ACC+15}]'
        a(f'v_mfma_f32_32x32x16_bf16 v[{ACC}:{ACC+15}], v[{b}:{b+3}], v[{b+4}:{b+7}], {src}')
        if s + 4 < 8: rd(s + 4)
    a('s_barrier')
    for qd in range(3):
        a(f'ds_write_b128 v227, v[{ACC+4*qd}:{ACC+4*qd+3}] offset:{qd*1024}')
    poll_check(a, 16, 229, FL1, 'S1', 20)
    stamp(a, 5)
    a(f'''
    v_lshlrev_b32 v20, 5, v1             ; lane*32
    s_lshl_b32 s33, s23, 13              ; d*8192
    s_lshl_b32 s34, s32, 11
    s_add_u32 s33, s33, s34
    s_mul_i32 s35, s31, {UXCH}
    s_lshl_b32 s36, s32, 10
    s_add_u32 s35, s35, s36
    s_add_u32 m0, s35, {UXL + 512}
    s_add_u32 s34, s33, 16
    buffer_load_dwordx4 v20, s[68:71], s33 offen sc1 lds
    s_add_u32 m0, s35, {UXL + 512 + 4096}
    s_nop 0
    buffer_load_dwordx4 v20, s[68:71], s34 offen sc1 lds
    ''')
    a(f'''
    s_or_b32 s28, s2, s30
    s_cmp_lg_u32 s28, 0
    s_cbranch_scc1 P1_NOEP
    s_mov_b64 exec, 1
    v_mov_b32 v20, 0
    v_mov_b32 v21, s3
    s_mov_b32 s29, {EPOCH}
    buffer_store_dword v21, v20, s[8:11], s29 offen sc1
    s_mov_b64 exec, -1
    ''')
    a.label('P1_NOEP')
    a('s_waitcnt lgkmcnt(0)')
    a('s_barrier')
    a('s_cmp_eq_u32 s32, 3')
    a('s_cbranch_scc1 P1_SKIP')
    for w in range(4):
        a(f'ds_read_b128 v[{120+4*w}:{123+4*w}], v228 offset:{w*3072}')
    a('v_lshlrev_b32 v136, 2, v224')
    a('v_add_u32 v136, s26, v136')
    a('s_waitcnt lgkmcnt(0)')
    a('v_pk_add_f32 v[120:121], v[120:121], v[124:125]')
    a('v_pk_add_f32 v[122:123], v[122:123], v[126:127]')
    a('v_pk_add_f32 v[128:129], v[128:129], v[132:133]')
    a('v_pk_add_f32 v[130:131], v[130:131], v[134:135]')
    a('v_pk_add_f32 v[120:121], v[120:121], v[128:129]')
    a('v_pk_add_f32 v[122:123], v[122:123], v[130:131]')
    for qq in range(3):
        a(f's_cmp_lg_u32 s32, {qq}')
        a(f's_cbranch_scc1 P1_Q{qq}')
        for r in range(4):
            row0 = 8*qq + r; row1 = 8*qq + 4 + r
            i0 = tidx(ROWS_F[row0])
            i1 = tidx(ROWS_F[row1]) if row1 <= 20 else tidx(2048 + r)
            a(f'v_mul_i32_i24 v137, {4*(i1 - i0)}, v225')
            a(f'v_add_u32 v137, v137, v136')
            a(f'ds_write_b32 v137, v{120+r} offset:{4*i0}')
        a.label(f'P1_Q{qq}')
    a('s_branch P1_SKIP2')
    a.label('P1_SKIP')
    a(f'''
    v_mov_b32 v120, 0
    v_mov_b32 v121, 0
    v_mov_b32 v122, 0
    v_mov_b32 v123, 0
    v_mov_b32 v136, s26
    ds_write_b32 v136, v120 offset:{4*ZSLOT}
    v_and_b32 v137, 7, v1
    v_mul_u32_u24 v137, {CPY}, v137
    s_mul_i32 s28, s31, {KCCH}
    v_add_u32 v137, s28, v137
    ds_write_b128 v137, v[120:123] offset:4096
    ''')
    a.label('P1_SKIP2')
    a('s_waitcnt lgkmcnt(0)')
    a('s_barrier')
    for j in range(15):
        a(f'ds_read_b32 v{168+j}, v{152+j}')
    a(f'''
    s_mul_i32 s28, s31, {KCCH}
    v_lshlrev_b32 v136, 4, v5
    v_add_u32 v136, s28, v136
    ''')
    a('s_waitcnt lgkmcnt(0)')
    for i in range(6):
        a(f'v_cvt_pk_bf16_f32 v{184+i}, v{168+2*i}, v{169+2*i}')
        a(f'v_cvt_pk_bf16_f32 v{196+i}, v{169+2*i}, v{170+2*i}')
        a(f'v_cvt_pk_bf16_f32 v{190+i}, v{170+2*i}, v{171+2*i}')
        a(f'v_cvt_pk_bf16_f32 v{202+i}, v{171+2*i}, v{172+2*i}')
    for c in range(8):
        m = c >> 1
        base = (184 if c % 2 == 0 else 196)
        r = base + m if m % 2 == 0 else base + 6 + (m - 1)
        a(f'ds_write_b128 v136, v[{r}:{r+3}] offset:{c*CPY}')
    a('s_waitcnt vmcnt(0) lgkmcnt(0)')
    a('s_barrier')
    stamp(a, 6)
```

```python
from common import *
import p1
from p1 import UXL, UXCH, CPY, KCCH, CNT

ACC = 16; PRE = 32; BR = 64; AR = 96
PD = int(os.environ.get('PD', '5'))

def schedule(role):
    steps = []
    if role == 'Q':
        tiles = [5, 4, 3, 2]
        for e in range(40, -8, -1):
            mf = []
            for sl, h in enumerate(tiles):
                i = 8*h - e
                if 0 <= i <= 8*h + 7: mf.append((sl, i, ('B', e)))
            steps.append(dict(loads=[('B', e), ('A', 40 - e)], mf=mf))
    else:
        tiles = [7, 6, 1, 0]
        for e in range(56, -8, -1):
            s = 56 - e
            loads = [('B', e), ('A', s)]
            mf = []
            for sl, h in enumerate(tiles[:2]):
                i = 8*h - e
                if 0 <= i <= 8*h + 7: mf.append((sl, i, ('B', e)))
            if s < 16:
                e2 = 8 - s
                loads.append(('C', e2))
                mf.append((2, s, ('C', e2)))
                if s >= 8: mf.append((3, s - 8, ('C', e2)))
            steps.append(dict(loads=loads, mf=mf))
    return tiles, steps

def reg_of(role, kind, idx):
    if kind == 'A':
        ring = 32 if role == 'Q' else 16
        return AR + 4 * (idx % ring)
    if kind == 'B':
        return BR + 4 * ((idx + 8) % 8)
    return AR + 64 + 4 * ((idx + 8) % 8)

def ld(role, kind, idx):
    r = reg_of(role, kind, idx)
    if kind == 'A':
        return f'ds_read_b128 v[{r}:{r+3}], v8 offset:{64*(63-idx)}'
    return f'ds_read_b128 v[{r}:{r+3}], v9 offset:{64*(idx+7)}'

def pre_stream():
    s = []
    for sl in range(4):
        b = PRE + 8*sl
        t = 10 + 4*(sl & 1) - 0
        t = 236 + 4*(sl & 1)
        s += [f'v_lshlrev_b32 v{t}, 16, v{b}', f'v_and_b32 v{t+1}, 0xffff0000, v{b}',
              f'v_lshlrev_b32 v{t+2}, 16, v{b+1}', f'v_and_b32 v{t+3}, 0xffff0000, v{b+1}',
              f'v_mul_f32 v{t}, v{t}, v7', f'v_mul_f32 v{t+1}, v{t+1}, v7',
              f'v_mul_f32 v{t+2}, v{t+2}, v7', f'v_mul_f32 v{t+3}, v{t+3}, v7',
              f'v_cvt_pk_bf16_f32 v{t}, v{t}, v{t+1}', f'v_cvt_pk_bf16_f32 v{t+2}, v{t+2}, v{t+3}',
              f'v_lshlrev_b32 v{b}, 16, v{t}', f'v_and_b32 v{b+1}, 0xffff0000, v{t}',
              f'v_lshlrev_b32 v{b+2}, 16, v{t+2}', f'v_and_b32 v{b+3}, 0xffff0000, v{t+2}',
              f'v_and_b32 v{b+7}, 0xffff0000, v{b+5}', f'v_lshlrev_b32 v{b+6}, 16, v{b+5}',
              f'v_and_b32 v{b+5}, 0xffff0000, v{b+4}', f'v_lshlrev_b32 v{b+4}, 16, v{b+4}']
    return s

def mainloop(a, role):
    tiles, steps = schedule(role)
    n = len(steps)
    pd = PD if role == 'Q' else min(PD, 5)
    def nl(s): return len(steps[s]['loads']) if s < n else 0
    fill = pre_stream()
    for s in range(min(pd, n)):
        for k, i in steps[s]['loads']: a(ld(role, k, i))
    started = set()
    for s, st in enumerate(steps):
        allowed = sum(nl(s + k) for k in range(1, pd))
        a(f's_waitcnt lgkmcnt({min(allowed, 15)})')
        nxt = list(steps[s+pd]['loads']) if s + pd < n else []
        for (sl, i, (bk, e)) in st['mf']:
            ar = reg_of(role, 'A', i); br = reg_of(role, bk, e)
            c = ACC + 4*sl
            src = f'v[{c}:{c+3}]' if sl in started else '0'
            started.add(sl)
            a(f'v_mfma_f32_16x16x32_bf16 v[{c}:{c+3}], v[{ar}:{ar+3}], v[{br}:{br+3}], {src}')
            if nxt:
                k, i2 = nxt.pop(0); a(ld(role, k, i2))
            if fill and s >= 2: a(fill.pop(0))
        for k, i2 in nxt: a(ld(role, k, i2))
    for x in fill: a(x)

def conv(a):
    a(f'''
    s_load_dwordx2 s[24:25], s[0:1], {KA['dskip']}
    s_lshr_b32 s31, s30, 1
    s_and_b32 s32, s30, 1                ; role
    s_lshl_b32 s33, s2, 1
    s_add_u32 s33, s33, s31              ; channel d
    v_and_b32 v4, 15, v1                 ; n / m
    v_lshrrev_b32 v5, 4, v1              ; q / g
    v_lshlrev_b32 v6, 5, v4
    v_lshl_add_u32 v6, v5, 3, v6         ; 32n + 8q
    s_mul_i32 s34, s31, {KCCH}
    v_and_b32 v14, 7, v4
    v_sub_u32 v14, 7, v14
    v_mul_u32_u24 v14, {CPY}, v14
    v_lshrrev_b32 v15, 3, v4
    v_sub_u32 v15, v5, v15
    v_lshl_add_u32 v8, v15, 4, v14
    v_add_u32 v8, 16, v8
    v_add_u32 v8, s34, v8                ; A address
    s_mul_i32 s35, s31, {UXCH}
    s_add_u32 s35, s35, {UXL}
    v_lshlrev_b32 v9, 5, v4
    v_lshl_add_u32 v9, v5, 4, v9
    v_add_u32 v9, 32, v9                 ; +512 - 480
    v_add_u32 v9, s35, v9                ; B address
    v_add_u32 v10, s35, v6
    s_lshl_b32 s38, s33, 12              ; d*4096
    s_cmp_eq_u32 s32, 0
    ''')
    for sl in range(4):
        a(f's_mov_b32 s48, {512*[5,4,3,2][sl]}')
        a(f's_cselect_b32 s{44+sl}, {512*[7,6,1,0][sl]}, s48')
    for sl in range(4):
        a(f'v_add_u32 v11, s{44+sl}, v10')
        a(f'ds_read_b64 v[{PRE+8*sl}:{PRE+8*sl+1}], v11 offset:512')
        a(f'ds_read_b64 v[{PRE+8*sl+4}:{PRE+8*sl+5}], v11 offset:4608')
    for sl in range(4):
        a(f's_add_u32 s{44+sl}, s{44+sl}, s38')
    a('s_mov_b32 s26, %d' % (D*2))
    a('s_mov_b32 s27, 0x20000')
    srd(a, 20, 4, 5, ACT_BYTES, p1_HT())
    a(f'''
    s_lshl_b32 s42, s33, 1
    v_mov_b32 v7, s42
    s_waitcnt lgkmcnt(0)
    buffer_load_ushort v7, v7, s[24:27], 0 offen
    ''')
    a('s_cmp_eq_u32 s32, 0')
    a('s_cbranch_scc0 P2_Q')
    a('s_waitcnt vmcnt(0)')
    a('v_lshlrev_b32 v7, 16, v7')
    mainloop(a, 'P')
    a('s_branch P2_EPI')
    a.label('P2_Q')
    a('s_waitcnt vmcnt(0)')
    a('v_lshlrev_b32 v7, 16, v7')
    mainloop(a, 'Q')
    a.label('P2_EPI')
    stamp(a, 7)
    a('s_barrier')
    for sl in range(4):
        c = ACC + 4*sl; b = PRE + 8*sl
        t = 10 + 2*(sl & 1)
        a(f'v_cvt_pk_bf16_f32 v{t}, v{c}, v{c+1}')
        a(f'v_cvt_pk_bf16_f32 v{t+1}, v{c+2}, v{c+3}')
        a(f'v_lshlrev_b32 v{c}, 16, v{t}')
        a(f'v_and_b32 v{c+1}, 0xffff0000, v{t}')
        a(f'v_lshlrev_b32 v{c+2}, 16, v{t+1}')
        a(f'v_and_b32 v{c+3}, 0xffff0000, v{t+1}')
        a(f'v_pk_add_f32 v[{c}:{c+1}], v[{c}:{c+1}], v[{b}:{b+1}]')
        a(f'v_pk_add_f32 v[{c+2}:{c+3}], v[{c+2}:{c+3}], v[{b+2}:{b+3}]')
        a(f'v_cvt_pk_bf16_f32 v{t}, v{c}, v{c+1}')
        a(f'v_cvt_pk_bf16_f32 v{t+1}, v{c+2}, v{c+3}')
        a(f'v_lshlrev_b32 v{c}, 16, v{t}')
        a(f'v_and_b32 v{c+1}, 0xffff0000, v{t}')
        a(f'v_lshlrev_b32 v{c+2}, 16, v{t+1}')
        a(f'v_and_b32 v{c+3}, 0xffff0000, v{t+1}')
        a(f'v_pk_add_f32 v[{c}:{c+1}], v[{c}:{c+1}], v[{b+4}:{b+5}]')
        a(f'v_pk_add_f32 v[{c+2}:{c+3}], v[{c+2}:{c+3}], v[{b+6}:{b+7}]')
        a(f'v_cvt_pk_bf16_f32 v{c}, v{c}, v{c+1}')
        a(f'v_cvt_pk_bf16_f32 v{c+1}, v{c+2}, v{c+3}')
        a(f'buffer_store_dwordx2 v[{c}:{c+1}], v6, s[20:23], s{44+sl} offen sc1')
    p1.signal(a, 4, 4, f's_lshl_b32 s29, s2, 2\n    s_add_u32 s29, s29, {FL2}', 'S2')
    stamp(a, 8)

def p1_HT(): return HT_OFF

def prefetch_l2(a):
    a(f'''
    s_load_dwordx4 s[12:15], s[0:1], {KA['wg']}
    s_load_dwordx2 s[16:17], s[0:1], {KA['wd']}
    s_sub_u32 s31, s30, 4                ; hw
    s_and_b32 s32, s2, 7                 ; xcd
    s_lshr_b32 s33, s2, 3                ; j 0..27
    s_and_b32 s34, s32, 3
    s_mul_i32 s34, s34, 896
    s_and_b32 s34, s34, 0xffffff80
    s_lshl_b32 s35, s33, 4
    s_lshl_b32 s36, s31, 2
    s_add_u32 s35, s35, s36
    s_mul_i32 s35, s35, 3584
    s_add_u32 s35, s35, s34
    v_and_b32 v5, 7, v1
    v_lshlrev_b32 v5, 7, v5
    v_lshrrev_b32 v6, 3, v1
    v_mul_u32_u24 v6, 3584, v6
    v_add_u32 v5, v5, v6
    v_lshlrev_b32 v6, 7, v1
    s_waitcnt lgkmcnt(0)
    ''')
    srd(a, 40, 12, 13, D*F*2); srd(a, 44, 14, 15, D*F*2); srd(a, 48, 16, 17, D*F*2)
    a(f'''
    s_mov_b32 s38, -1
    s_mov_b32 s39, 0
    s_mov_b64 exec, s[38:39]
    buffer_load_dword v250, v5, s[40:43], s35 offen
    buffer_load_dword v251, v5, s[44:47], s35 offen
    s_mov_b64 exec, -1
    s_mul_i32 s35, s33, 57344
    s_mul_i32 s36, s31, {14*1024}
    s_add_u32 s35, s35, s36
    buffer_load_dword v252, v6, s[48:51], s35 offen
    s_add_u32 s35, s35, 8192
    s_mov_b32 s38, -1
    s_mov_b32 s39, 0xffff
    s_mov_b64 exec, s[38:39]
    buffer_load_dword v253, v6, s[48:51], s35 offen
    s_mov_b64 exec, -1
    ''')

def colsum(a):
    a(f'''
    s_sub_u32 s20, s2, 224
    s_cmp_ge_u32 s20, 28
    s_cbranch_scc1 CS_DONE
    s_cmp_lt_u32 s20, 14
    s_mov_b32 s21, {KA['wu']}
    s_cselect_b32 s21, {KA['wg']}, s21
    s_cselect_b32 s22, 0, 14
    s_cselect_b32 s23, 0, {F*4}
    s_sub_u32 s20, s20, s22
    s_add_u32 s24, s0, s21
    s_addc_u32 s25, s1, 0
    s_load_dwordx2 s[12:13], s[24:25], 0
    v_and_b32 v2, 15, v0
    v_lshrrev_b32 v3, 4, v0              ; rg 0..31
    v_mul_u32_u24 v4, {14*F*2}, v3
    v_lshl_add_u32 v4, v2, 4, v4
    s_lshl_b32 s26, s20, 8               ; col0*2
    s_mov_b32 s14, {D*F*2}
    s_mov_b32 s15, 0x20000
    s_waitcnt lgkmcnt(0)
    ''')
    srd(a, 16, 4, 5, 2*F*4, CS_OFF)
    for i in range(14):
        a(f's_add_u32 s27, s26, {i*F*2}')
        a(f'buffer_load_dwordx4 v[{8+4*i}:{11+4*i}], v4, s[12:15], s27 offen')
    A = 64
    for i in range(14):
        a(f's_waitcnt vmcnt({13-i})')
        dst = A if i == 0 else A + 8
        for k in range(4):
            a(f'v_lshlrev_b32 v{dst+2*k}, 16, v{8+4*i+k}')
            a(f'v_and_b32 v{dst+2*k+1}, 0xffff0000, v{8+4*i+k}')
        if i:
            for k in range(4):
                a(f'v_pk_add_f32 v[{A+2*k}:{A+2*k+1}], v[{A+2*k}:{A+2*k+1}], v[{A+8+2*k}:{A+8+2*k+1}]')
    a(f'''
    v_lshlrev_b32 v5, 5, v0
    ds_write_b128 v5, v[{A}:{A+3}]
    ds_write_b128 v5, v[{A+4}:{A+7}] offset:16
    v_and_b32 v6, 127, v0                ; c
    v_lshrrev_b32 v7, 7, v0
    v_lshlrev_b32 v80, 2, v6
    v_lshl_add_u32 v80, v7, 12, v80      ; part*8*512 + c*4
    s_waitcnt lgkmcnt(0)
    s_barrier
    ''')
    for i in range(8):
        a(f'ds_read_b32 v{84+i}, v80 offset:{i*512}')
    a('s_waitcnt lgkmcnt(0)')
    for i in range(1, 8):
        a(f'v_add_f32 v84, v84, v{84+i}')
    a(f'''
    v_lshlrev_b32 v5, 2, v0
    ds_write_b32 v5, v84 offset:16384
    s_waitcnt lgkmcnt(0)
    s_barrier
    v_cmp_gt_u32 vcc, 128, v0
    s_and_saveexec_b64 s[28:29], vcc
    s_cbranch_execz CS_ST
    ds_read_b32 v84, v5 offset:16384
    ds_read_b32 v85, v5 offset:{16384+512}
    ds_read_b32 v86, v5 offset:{16384+1024}
    ds_read_b32 v87, v5 offset:{16384+1536}
    s_lshl_b32 s28, s20, 9
    s_add_u32 s28, s28, s23
    s_waitcnt lgkmcnt(0)
    v_add_f32 v84, v84, v85
    v_add_f32 v86, v86, v87
    v_add_f32 v84, v84, v86
    buffer_store_dword v84, v5, s[16:19], s28 offen sc1
    CS_ST:
    s_mov_b64 exec, -1
    CS_DONE:
    ''')
    p1.signal(a, 4, 8, f's_lshl_b32 s29, s2, 2\n    s_add_u32 s29, s29, {FL2}', 'S2B')
    a('s_barrier')
```

```python
from common import *
import p1
EXP = os.environ.get('EXP', '')

GS = 1056
GATE, UP, HOF = 0, 8*GS + 16, 16*GS + 16
STG = HOF + 8*GS
NST = 5
NCH = 14
SB = 0
CSL = 160768
STATS = CSL + 896
SET = [32, 76]
ACC = 128

def acc(j, u): return ACC + 4 * (4*j + u)

def tile_map(a):
    a(f'''
    s_and_b32 s22, s2, 7                 ; xcd
    s_lshr_b32 s23, s2, 3                ; j
    s_lshr_b32 s20, s22, 2
    s_lshl_b32 s20, s20, 3
    s_lshr_b32 s24, s23, 2               ; rr
    s_add_u32 s20, s20, s24              ; r
    s_and_b32 s21, s22, 3
    s_lshl_b32 s21, s21, 2
    s_and_b32 s25, s23, 3                ; cc
    s_add_u32 s21, s21, s25              ; c
    ''')

def g1_compute(a):
    tile_map(a)
    srd(a, 16, 4, 5, HID_BYTES, HID_OFF)
    srd(a, 48, 4, 5, L*4, RS_OFF)
    a(f'''
    s_lshr_b32 s31, s30, 1               ; tw
    s_and_b32 s32, s30, 1                ; fw
    v_lshrrev_b32 v2, 4, v1              ; g
    v_bfe_u32 v3, v1, 2, 2               ; r
    v_and_b32 v4, 3, v1                  ; c
    v_and_b32 v5, 1, v2
    v_lshl_add_u32 v5, v5, 2, v3
    v_mul_u32_u24 v5, {GS}, v5
    v_lshrrev_b32 v6, 1, v2
    v_lshl_add_u32 v5, v6, 8, v5
    v_and_b32 v7, 1, v4
    v_lshl_add_u32 v6, v7, 3, v5
    v_lshrrev_b32 v7, 1, v4
    v_mul_u32_u24 v7, {UP}, v7
    v_add_u32 v6, v6, v7
    s_and_b32 s33, s21, 1
    s_lshl_b32 s33, s33, 5
    s_mul_i32 s35, s32, 96
    s_add_u32 s35, s35, s33
    v_add_u32 v8, s35, v6
    v_add_u32 v9, {2*STG}, v8
    v_add_u32 v10, {4*STG}, v8
    s_lshl_b32 s35, s32, 4
    s_add_u32 s35, s35, 192
    s_add_u32 s35, s35, s33
    v_add_u32 v11, s35, v6
    v_add_u32 v12, {2*STG}, v11
    v_add_u32 v13, {4*STG}, v11
    v_lshl_add_u32 v6, v4, 3, v5
    s_lshl_b32 s35, s31, 7
    s_add_u32 s35, s35, {HOF}
    s_lshl_b32 s36, s32, 6
    s_add_u32 s37, s35, s36
    v_add_u32 v14, s37, v6
    v_add_u32 v15, {2*STG}, v14
    v_add_u32 v16, {4*STG}, v14
    s_xor_b32 s36, s36, 64
    s_add_u32 s37, s35, s36
    v_add_u32 v17, s37, v6
    v_add_u32 v18, {2*STG}, v17
    v_add_u32 v19, {4*STG}, v17
    v_mov_b32 v120, 0x3f803f80
    v_mov_b32 v121, 0x3f803f80
    v_mov_b32 v122, 0x3f803f80
    v_mov_b32 v123, 0x3f803f80
    v_and_b32 v20, 15, v1
    v_and_b32 v21, 3, v20
    v_cmp_eq_u32 s[60:61], 1, v21
    v_cmp_eq_u32 s[62:63], 2, v21
    v_cmp_eq_u32 s[64:65], 3, v21
    v_lshrrev_b32 v21, 2, v20
    v_cmp_eq_u32 s[66:67], v21, v2
    v_cmp_gt_u32 s[68:69], 32, v1
    ''')
    def reads(k):
        st = k % NST; pr = st >> 1; off = (st & 1) * STG
        S = SET[k & 1]
        out = []
        for u in range(4):
            r = S + 28 + 4*u
            vb = (14 if u < 2 else 17) + pr
            for rho in range(2):
                out.append(f'ds_read_b64_tr_b16 v[{r+2*rho}:{r+2*rho+1}], v{vb} offset:{off + rho*512 + 32*(u & 1)}')
        for j in range(7):
            r = S + 4*j
            for rho in range(2):
                if j < 6:
                    out.append(f'ds_read_b64_tr_b16 v[{r+2*rho}:{r+2*rho+1}], v{8+pr} offset:{off + rho*512 + 16*j}')
                else:
                    out.append(f'ds_read_b64_tr_b16 v[{r+2*rho}:{r+2*rho+1}], v{11+pr} offset:{off + rho*512}')
        return out
    def mfmas(k):
        S = SET[k & 1]
        out = []
        for j in range(7):
            for u in range(4):
                c = acc(j, u)
                src = '0' if k == 0 else f'v[{c}:{c+3}]'
                out.append(f'v_mfma_f32_16x16x32_bf16 v[{c}:{c+3}], v[{S+4*j}:{S+4*j+3}], v[{S+28+4*u}:{S+28+4*u+3}], {src}')
        return out
    G0, S0, G1, S1 = 240, 244, 248, 252
    def dots(k):
        S = SET[k & 1]
        out = []
        for u, (G, Sm) in enumerate(((G0, S0), (G1, S1))):
            b = S + 28 + 4*u
            sg = '0' if k == 0 else f'v[{G}:{G+3}]'
            ss = '0' if k == 0 else f'v[{Sm}:{Sm+3}]'
            out.append(f'v_mfma_f32_16x16x32_bf16 v[{G}:{G+3}], v[{b}:{b+3}], v[{b}:{b+3}], {sg}')
            out.append(f'v_mfma_f32_16x16x32_bf16 v[{Sm}:{Sm+3}], v[120:123], v[{b}:{b+3}], {ss}')
        return out
    tail = lines_of(f'''
        v_cndmask_b32 v24, v{S1}, v{S0}, s[68:69]
        v_cndmask_b32 v25, v{G0}, v{G0+1}, s[60:61]
        v_cndmask_b32 v26, v{G1}, v{G1+1}, s[60:61]
        v_cndmask_b32 v25, v25, v{G0+2}, s[62:63]
        v_cndmask_b32 v26, v26, v{G1+2}, s[62:63]
        v_cndmask_b32 v25, v25, v{G0+3}, s[64:65]
        v_cndmask_b32 v26, v26, v{G1+3}, s[64:65]
        v_mov_b32 v27, 0
        v_cndmask_b32 v25, v27, v25, s[66:67]
        v_cndmask_b32 v26, v27, v26, s[66:67]
        v_permlane32_swap_b32 v25, v26
        v_add_f32 v26, v25, v26
        v_mov_b32 v27, v26
        v_permlane16_swap_b32 v26, v27
        v_add_f32 v26, v26, v27
        v_mul_f32 v24, {fhex(1.0/448)}, v24
        v_mul_f32 v26, {fhex(1.0/448)}, v26
        v_fma_f32 v26, -v24, v24, v26
        v_max_f32 v26, 0, v26
        v_cvt_pk_bf16_f32 v25, v24, v26
        v_lshlrev_b32 v24, 16, v25
        v_and_b32 v26, 0xffff0000, v25
        v_add_f32 v26, {fhex(1e-5)}, v26
        v_cvt_pk_bf16_f32 v26, v26, v26
        v_and_b32 v26, 0xffff0000, v26
        v_sqrt_f32 v26, v26
        v_cvt_pk_bf16_f32 v26, v26, v26
        v_and_b32 v26, 0xffff0000, v26
        v_rcp_f32 v26, v26
        v_lshlrev_b32 v21, 2, v1
        v_add_u32 v21, {STATS}, v21
        s_lshl_b32 s36, s30, 8
        v_add_u32 v22, s36, v21
        ds_write_b32 v22, v24
        v_mul_f32 v26, v26, v26
        v_lshrrev_b32 v3, 5, v1
        v_bfe_u32 v4, v1, 4, 1
        s_mul_i32 s37, s32, 192
        v_lshlrev_b32 v6, 4, v4
        v_add_u32 v6, {CSL}, v6
        v_add_u32 v9, s37, v6
        s_lshl_b32 s37, s32, 5
        s_add_u32 s37, s37, 384
        v_add_u32 v10, s37, v6
        v_mul_u32_u24 v7, 57344, v3
        v_and_b32 v8, 31, v1
        v_lshl_add_u32 v7, v8, 4, v7
        s_lshl_b32 s38, s20, 3
        s_lshl_b32 s34, s31, 2
        s_add_u32 s38, s38, s34
        s_lshl_b32 s34, s32, 1
        s_add_u32 s39, s38, s34
        s_xor_b32 s34, s34, 2
        s_add_u32 s38, s38, s34
        s_lshl_b32 s44, s39, 4
        s_mul_i32 s39, s39, 57344
        s_mul_i32 s38, s38, 57344
        s_mul_i32 s45, s21, {7*512}
        s_mul_i32 s46, s32, {3*512}
        s_add_u32 s46, s46, s45
        s_lshl_b32 s47, s32, 3
        s_add_u32 s47, s47, s45
        s_add_u32 s47, s47, {6*512}
        s_add_u32 s40, s39, s46
        s_add_u32 s41, s39, s47
        s_add_u32 s42, s38, s46
        s_add_u32 s43, s38, s47
        s_xor_b32 s36, s30, 1
        s_lshl_b32 s36, s36, 8
        v_add_u32 v22, s36, v21
        ''')
    for it in range(NCH + 1):
        if it < NCH: a('s_barrier')
        rd = reads(it) if it < NCH else []
        mf = mfmas(it - 1) if it >= 1 else []
        dt = dots(it - 1) if it >= 1 else []
        if it == NCH:
            for x in dt: a(x)
            fill = list(tail)
            for i, x in enumerate(mf):
                a(x)
                if i >= 3:
                    for _ in range(3):
                        if fill: a(fill.pop(0))
            for x in fill: a(x)
        elif not mf:
            for x in rd: a(x)
        else:
            mf = dt + mf
            for i, x in enumerate(mf):
                a(x)
                if rd: a(rd.pop(0))
            for x in rd: a(x)
        if it < NCH: a('s_waitcnt lgkmcnt(0)')
        if it == 0: stamp(a, 9)
    for j in range(7):
        va = 9 if j < 6 else 10
        o = 32*j if j < 6 else 0
        a(f'ds_read_b128 v[{32+8*j}:{35+8*j}], v{va} offset:{o}')
        a(f'ds_read_b128 v[{36+8*j}:{39+8*j}], v{va} offset:{448 + o}')
    a('s_cmp_lg_u32 s21, 0')
    a('s_cbranch_scc1 P3_NORS')
    a(f'''
    v_and_b32 v5, 15, v1
    v_lshl_add_u32 v5, v3, 4, v5
    v_lshlrev_b32 v5, 2, v5
    s_lshl_b32 s44, s44, 2
    buffer_store_dword v26, v5, s[48:51], s44 offen sc1
    ''')
    a.label('P3_NORS')
    OUT = 88
    for pr in range(2):
        st = 24 if pr == 0 else 28
        for j in range(7):
            T1 = acc(j, 2*pr); T2 = acc(j, 2*pr + 1)
            for i in range(4):
                a(f'v_permlane32_swap_b32 v{T1+i}, v{T2+i}')
        if pr == 0:
            a('s_waitcnt lgkmcnt(0)')
            a('s_barrier')
            a('ds_read_b32 v28, v22')
        else:
            a('s_waitcnt lgkmcnt(0)')
        for j in range(7):
            T1 = acc(j, 2*pr); T2 = acc(j, 2*pr + 1)
            cg = 32 + 8*j; cu = 36 + 8*j
            for hh in range(2):
                a(f'v_pk_fma_f32 v[{T1+2*hh}:{T1+2*hh+1}], v[{cg+2*hh}:{cg+2*hh+1}], v[{st}:{st+1}], v[{T1+2*hh}:{T1+2*hh+1}] op_sel:[0,0,0] op_sel_hi:[1,0,1] neg_lo:[0,1,0] neg_hi:[0,1,0]')
                a(f'v_pk_fma_f32 v[{T2+2*hh}:{T2+2*hh+1}], v[{cu+2*hh}:{cu+2*hh+1}], v[{st}:{st+1}], v[{T2+2*hh}:{T2+2*hh+1}] op_sel:[0,0,0] op_sel_hi:[1,0,1] neg_lo:[0,1,0] neg_hi:[0,1,0]')
            for hh in range(2):
                a(f'v_pk_mul_f32 v[{T1+2*hh}:{T1+2*hh+1}], v[{T1+2*hh}:{T1+2*hh+1}], v[{T2+2*hh}:{T2+2*hh+1}]')
            o = OUT + 16*pr + 4*(j >> 1) + 2*(j & 1)
            a(f'v_cvt_pk_bf16_f32 v{o}, v{T1}, v{T1+1}')
            a(f'v_cvt_pk_bf16_f32 v{o+1}, v{T1+2}, v{T1+3}')
            if j < 6 and (j & 1):
                ob = OUT + 16*pr + 4*(j >> 1)
                a(f'buffer_store_dwordx4 v[{ob}:{ob+3}], v7, s[16:19], s{40 + 2*pr} offen offset:{512*(j >> 1)} sc1')
            if j == 6:
                a(f'buffer_store_dwordx2 v[{o}:{o+1}], v7, s[16:19], s{41 + 2*pr} offen sc1')
    p1.signal(a, 8, 4, f's_lshl_b32 s29, s20, 4\n    s_add_u32 s29, s29, s21\n    s_lshl_b32 s29, s29, 2\n    s_add_u32 s29, s29, {FL3}', 'S3')
    stamp(a, 10)

def g1_loader(a):
    tile_map(a)
    a(f'''
    s_load_dwordx4 s[52:55], s[0:1], {KA['wg']}
    s_mul_i32 s44, s24, 7
    s_lshr_b32 s44, s44, 2
    s_mul_i32 s25, s25, 3
    s_add_u32 s44, s44, s25
    s_cmp_ge_u32 s44, 14
    s_cselect_b32 s25, 14, 0
    s_sub_u32 s44, s44, s25              ; rotation
    s_sub_u32 s31, s30, 4                ; lw
    v_lshrrev_b32 v5, 4, v1
    v_and_b32 v6, 15, v1
    v_mul_u32_u24 v4, 3584, v5
    v_lshl_add_u32 v4, v6, 4, v4         ; W voffset
    v_lshlrev_b32 v8, 12, v5
    v_lshl_add_u32 v8, v6, 4, v8         ; h voffset
    s_mul_i32 s32, s21, 224
    s_and_b32 s33, s21, 1
    s_lshl_b32 s33, s33, 5
    s_sub_u32 s32, s32, s33
    s_lshl_b32 s33, s31, 1
    s_mul_i32 s34, s33, {4*3584}
    s_add_u32 s32, s32, s34
    s_lshl_b32 s35, s33, 14
    s_lshl_b32 s36, s20, 8
    s_add_u32 s35, s35, s36
    s_mul_i32 s37, s33, {GS}
    s_mov_b32 s14, {D*F*2}
    s_mov_b32 s15, 0x20000
    s_mov_b32 s18, {D*F*2}
    s_mov_b32 s19, 0x20000
    v_lshlrev_b32 v9, 4, v1
    s_waitcnt lgkmcnt(0)
    s_mov_b32 s12, s52
    s_mov_b32 s13, s53
    s_mov_b32 s16, s54
    s_mov_b32 s17, s55
    ''')
    srd(a, 40, 4, 5, ACT_BYTES, HT_OFF)
    srd(a, 48, 4, 5, 2*F*4, CS_OFF)
    def kk(k):
        a(f's_add_u32 s45, s44, {k}')
        a('s_cmp_ge_u32 s45, 14')
        a('s_cselect_b32 s46, 14, 0')
        a('s_sub_u32 s45, s45, s46')
    def issue_w(k):
        base = SB + (k % NST) * STG
        kk(k)
        a(f's_mul_i32 s46, s45, {32*3584}')
        a('s_add_u32 s46, s46, s32')
        a(f's_add_u32 s39, s46, {4*3584}')
        for mat, (sr, reg) in enumerate(((12, GATE), (16, UP))):
            for i in range(2):
                a(f's_add_u32 m0, s37, {base + reg + i*GS}')
                a(f'buffer_load_dwordx4 v4, s[{sr}:{sr+3}], s{39 if i else 46} offen lds')
    def issue_h(k):
        base = SB + (k % NST) * STG
        kk(k)
        a('s_lshl_b32 s47, s45, 17')
        a('s_add_u32 s47, s47, s35')
        a(f's_add_u32 s39, s47, {4*4096}')
        for i in range(2):
            a(f's_add_u32 m0, s37, {base + HOF + i*GS}')
            a(f'buffer_load_dwordx4 v8, s[40:43], s{39 if i else 47} offen sc1 lds')
    for k in range(NST): issue_w(k)
    p1.poll_issue(a, 16, 9, FL2)
    p1.poll_check(a, 16, 9, FL2, 'S2', 20)
    for k in range(NST): issue_h(k)
    a('s_cmp_lg_u32 s31, 0')
    a('s_cbranch_scc1 P3_NOCS')
    a(f'''
    v_cmp_gt_u32 vcc, 28, v1
    v_subrev_u32 v15, {28*16}, v9
    v_add_u32 v15, {F*4}, v15
    v_cndmask_b32 v15, v15, v9, vcc
    s_mul_i32 s58, s21, 448
    s_mov_b32 s56, -1
    s_mov_b32 s57, 0x00ffffff
    s_mov_b64 exec, s[56:57]
    s_mov_b32 m0, {CSL}
    s_nop 0
    buffer_load_dwordx4 v15, s[48:51], s58 offen sc1 lds
    s_mov_b64 exec, -1
    ''')
    a.label('P3_NOCS')
    seq = [('h', k) for k in range(NST) for _ in range(2)]
    issued = NST
    for k in range(NCH):
        last = max(i for i, x in enumerate(seq) if x[1] == k)
        allowed = len(seq) - 1 - last
        a(f's_waitcnt vmcnt({allowed})')
        a('s_barrier')
        if k >= 1 and k - 1 + NST < NCH:
            kn = k - 1 + NST
            issue_w(kn); issue_h(kn)
            seq += [('w', kn)] * 4 + [('h', kn)] * 2
    a('s_waitcnt vmcnt(0)')
    a('s_barrier')
```

```python
from common import *
import p1
RD = 7
HTL = 0
RING = 8192
ACC = 16
AF = 80
BF = 96
def acc(a_, u): return ACC + 4 * (4*a_ + u)

def gemm2(a):
    a(f'''
    s_load_dwordx4 s[44:47], s[0:1], {KA['wd']}
    s_sub_u32 s31, s30, 4                ; w 0..3
    s_and_b32 s22, s2, 7
    s_lshr_b32 s23, s2, 3
    s_lshl_b32 s20, s22, 2
    s_and_b32 s24, s23, 3
    s_add_u32 s20, s20, s24              ; rt
    s_lshr_b32 s21, s23, 2               ; ct
    s_mul_i32 s40, s24, 7
    s_lshr_b32 s40, s40, 1
    s_lshl_b32 s41, s21, 1
    s_add_u32 s40, s40, s41
    s_cmp_ge_u32 s40, 14
    s_cselect_b32 s41, 14, 0
    s_sub_u32 s40, s40, s41
    v_lshrrev_b32 v3, 3, v1              ; sub
    v_and_b32 v4, 7, v1
    v_bfe_u32 v5, v1, 4, 2
    v_lshlrev_b32 v5, 1, v5
    v_xor_b32 v4, v4, v5
    v_mul_u32_u24 v6, 896, v3
    v_lshl_add_u32 v6, v4, 4, v6
    v_lshlrev_b32 v7, 4, v1
    s_mul_i32 s32, s31, {14*32*896}
    s_lshl_b32 s33, s21, 7
    s_add_u32 s32, s32, s33
    s_lshl_b32 s33, s20, 2
    s_mul_i32 s33, s33, 57344
    s_mul_i32 s34, s31, {14*1024}
    s_add_u32 s33, s33, s34
    s_mul_i32 s35, s31, {RD*4096}
    s_add_u32 s35, s35, {RING}
    s_mov_b32 s14, {F*D*2}
    s_mov_b32 s15, 0x20000
    s_mov_b32 s18, {ACT_BYTES}
    s_mov_b32 s19, 0x20000
    s_waitcnt lgkmcnt(0)
    s_mov_b32 s12, s44
    s_mov_b32 s13, s45
    s_mov_b32 s16, s46
    s_mov_b32 s17, s47
    ''')
    srd(a, 48, 4, 5, ACT_BYTES, HT_OFF)
    srd(a, 52, 4, 5, HID_BYTES, HID_OFF)
    srd(a, 56, 4, 5, L*4, RS_OFF)
    def kk(i):
        a(f's_add_u32 s41, s40, {i}')
        a('s_cmp_ge_u32 s41, 14')
        a('s_cselect_b32 s42, 14, 0')
        a('s_sub_u32 s41, s41, s42')
    def issue_w(i):
        sl = i % RD
        kk(i)
        a(f's_mul_i32 s42, s41, {32*896}')
        a('s_add_u32 s42, s42, s32')
        for k in range(4):
            a(f's_add_u32 m0, s35, {sl*4096 + k*1024}')
            if k: a(f's_add_u32 s42, s42, {8*896}')
            else: a('s_nop 0')
            a(f'buffer_load_dwordx4 v6, s[12:15], s42 offen lds')
    def issue_h(i):
        sl = i % RD
        kk(i)
        a('s_lshl_b32 s42, s41, 10')
        a('s_add_u32 s42, s42, s33')
        for u in range(4):
            r = BF + 16*sl + 4*u
            if u: a(f's_add_u32 s42, s42, 57344')
            a(f'buffer_load_dwordx4 v[{r}:{r+3}], v7, s[52:55], s42 offen sc1')
    a(f'''
    v_lshlrev_b32 v8, 12, v3
    v_and_b32 v9, 7, v1
    v_lshl_add_u32 v8, v9, 4, v8
    s_lshl_b32 s37, s21, 6
    s_lshl_b32 s38, s31, 4
    s_add_u32 s37, s37, s38
    s_lshl_b32 s37, s37, 12
    s_lshl_b32 s38, s20, 7
    s_add_u32 s37, s37, s38
    s_lshl_b32 s39, s31, 11
    s_add_u32 m0, s39, {HTL}
    s_nop 0
    buffer_load_dwordx4 v8, s[48:51], s37 offen sc1 lds
    s_add_u32 m0, s39, {HTL + 1024}
    s_add_u32 s37, s37, {8*4096}
    buffer_load_dwordx4 v8, s[48:51], s37 offen sc1 lds
    ''')
    for i in range(RD): issue_w(i)
    a(f'''
    v_lshrrev_b32 v2, 4, v1              ; g
    v_bfe_u32 v3, v1, 2, 2               ; r
    v_and_b32 v4, 3, v1                  ; c
    v_lshrrev_b32 v5, 1, v2
    v_lshlrev_b32 v5, 4, v5
    v_and_b32 v8, 1, v2
    v_lshl_add_u32 v5, v8, 2, v5
    v_add_u32 v5, v5, v3
    v_bfe_u32 v9, v5, 1, 2
    v_lshlrev_b32 v5, 7, v5
    v_lshl_add_u32 v5, v4, 3, v5
    v_add_u32 v5, s35, v5
    ''')
    for a_ in range(4):
        a(f'v_xor_b32 v8, {a_}, v9')
        a(f'v_lshl_add_u32 v{10+a_}, v8, 5, v5')
    a(f'''
    v_and_b32 v15, 3, v1
    v_lshlrev_b32 v15, 4, v15
    s_lshr_b32 s36, s20, 1
    s_lshl_b32 s36, s36, 6
    s_add_u32 s36, s36, {FL3}
    ''')
    p1.poll_issue(a, 84, 15, 's36')
    p1.poll_check(a, 84, 15, 's36', 'S3', 88)
    stamp(a, 9)
    a(f'''
    v_and_b32 v14, 15, v1
    s_lshl_b32 s36, s20, 6
    s_lshl_b32 s37, s31, 4
    s_add_u32 s36, s36, s37
    s_lshl_b32 s36, s36, 2
    v_lshlrev_b32 v14, 2, v14
    buffer_load_dword v14, v14, s[56:59], s36 offen sc1
    ''')
    seq = []
    for i in range(RD):
        issue_h(i); seq += [i]*4
    for i in range(14):
        last = max(k for k, x in enumerate(seq) if x == i)
        a(f's_waitcnt vmcnt({len(seq) - 1 - last})')
        sl = i % RD
        for a_ in range(4):
            for rho in range(2):
                r = AF + 4*a_ + 2*rho
                a(f'ds_read_b64_tr_b16 v[{r}:{r+1}], v{10+a_} offset:{sl*4096 + rho*1024}')
        for a_ in range(4):
            a(f's_waitcnt lgkmcnt({6 - 2*a_})')
            for u in range(4):
                c = acc(a_, u)
                b = BF + 16*sl + 4*u
                src = '0' if i == 0 else f'v[{c}:{c+3}]'
                a(f'v_mfma_f32_16x16x32_bf16 v[{c}:{c+3}], v[{AF+4*a_}:{AF+4*a_+3}], v[{b}:{b+3}], {src}')
        if i + RD < 14:
            issue_w(i + RD); issue_h(i + RD); seq += [i + RD]*8
    a('s_barrier')
    a(f'''
    s_lshl_b32 s36, s31, 14
    v_add_u32 v8, s36, v7
    v_add_u32 v8, {RING}, v8
    ''')
    for u in range(4):
        a(f's_cmp_eq_u32 s31, {u}')
        a(f's_cbranch_scc1 P4_W{u}')
        for a_ in range(4):
            c = acc(a_, u)
            a(f'ds_write_b128 v8, v[{c}:{c+3}] offset:{(u*4 + a_)*1024}')
        a.label(f'P4_W{u}')
    for u in range(4):
        a(f's_cmp_lg_u32 s31, {u}')
        a(f's_cbranch_scc1 P4_M{u}')
        for a_ in range(4):
            c = acc(a_, u)
            for i in range(4):
                a(f'v_mov_b32 v{96+4*a_+i}, v{c+i}')
        a.label(f'P4_M{u}')
    a(f'''
    s_lshl_b32 s37, s31, 12
    v_add_u32 v8, s37, v7
    v_add_u32 v8, {RING}, v8
    v_lshl_add_u32 v5, v2, 2, v3
    v_lshlrev_b32 v5, 7, v5
    v_lshl_add_u32 v5, v4, 3, v5
    s_lshl_b32 s36, s31, 5
    v_add_u32 v5, s36, v5
    v_and_b32 v9, 15, v1
    v_mul_u32_u24 v9, 896, v9
    v_lshl_add_u32 v9, v2, 3, v9
    s_lshl_b32 s38, s20, 6
    s_lshl_b32 s37, s31, 4
    s_add_u32 s38, s38, s37
    s_mul_i32 s38, s38, 896
    s_lshl_b32 s37, s21, 7
    s_add_u32 s38, s38, s37
    s_waitcnt lgkmcnt(0)
    s_barrier
    ''')
    for k in range(1, 4):
        a(f's_add_u32 s36, s31, {k}')
        a('s_and_b32 s36, s36, 3')
        a('s_lshl_b32 s36, s36, 14')
        a(f'v_add_u32 v10, s36, v8')
        for a_ in range(4):
            r = 112 + 16*(k-1) + 4*a_
            a(f'ds_read_b128 v[{r}:{r+3}], v10 offset:{a_*1024}')
    for a_ in range(4):
        a(f'ds_read_b64_tr_b16 v[{160+2*a_}:{161+2*a_}], v5 offset:{HTL + a_*2048}')
    a('s_waitcnt lgkmcnt(0)')
    for a_ in range(4):
        c = 96 + 4*a_
        for k in range(3):
            r = 112 + 16*k + 4*a_
            a(f'v_pk_add_f32 v[{c}:{c+1}], v[{c}:{c+1}], v[{r}:{r+1}]')
            a(f'v_pk_add_f32 v[{c+2}:{c+3}], v[{c+2}:{c+3}], v[{r+2}:{r+3}]')
    for a_ in range(4):
        c = 96 + 4*a_
        t = 170 + 4*(a_ & 1)
        a(f'v_pk_mul_f32 v[{c}:{c+1}], v[{c}:{c+1}], v[14:15] op_sel_hi:[1,0]')
        a(f'v_pk_mul_f32 v[{c+2}:{c+3}], v[{c+2}:{c+3}], v[14:15] op_sel_hi:[1,0]')
        a(f'v_cvt_pk_bf16_f32 v{c}, v{c}, v{c+1}')
        a(f'v_cvt_pk_bf16_f32 v{c+2}, v{c+2}, v{c+3}')
        a(f'v_and_b32 v{c+1}, 0xffff0000, v{c}')
        a(f'v_lshlrev_b32 v{c}, 16, v{c}')
        a(f'v_and_b32 v{c+3}, 0xffff0000, v{c+2}')
        a(f'v_lshlrev_b32 v{c+2}, 16, v{c+2}')
        h = 160 + 2*a_
        a(f'v_lshlrev_b32 v{t}, 16, v{h}')
        a(f'v_and_b32 v{t+1}, 0xffff0000, v{h}')
        a(f'v_lshlrev_b32 v{t+2}, 16, v{h+1}')
        a(f'v_and_b32 v{t+3}, 0xffff0000, v{h+1}')
        a(f'v_pk_add_f32 v[{c}:{c+1}], v[{c}:{c+1}], v[{t}:{t+1}]')
        a(f'v_pk_add_f32 v[{c+2}:{c+3}], v[{c+2}:{c+3}], v[{t+2}:{t+3}]')
        a(f'v_cvt_pk_bf16_f32 v{c}, v{c}, v{c+1}')
        a(f'v_cvt_pk_bf16_f32 v{c+1}, v{c+2}, v{c+3}')
        a(f'buffer_store_dwordx2 v[{c}:{c+1}], v9, s[16:19], s38 offen offset:{32*a_}')
```

```python
import sys
sys.path.insert(0, 'gen2')
from common import *
import p1, p2, p3, p4

STOP = int(os.environ.get('STOP', '9'))

def gen():
    a = Asm()
    stamp_begin(a)
    p1.phase1(a)
    if STOP <= 1:
        a('s_branch M_FIN')
    a('s_cmp_ge_u32 s2, 224')
    a('s_cbranch_scc1 M_CS')
    a('s_cmp_ge_u32 s30, 4')
    a('s_cbranch_scc1 M_HELP')
    p2.conv(a)
    if STOP <= 2: a('s_branch M_FIN')
    a('s_branch M_G1C')
    a.label('M_HELP')
    p2.prefetch_l2(a)
    a('s_barrier')
    if STOP <= 2: a('s_branch M_FIN')
    a('s_branch M_G1L')
    a.label('M_CS')
    p2.colsum(a)
    if STOP <= 2: a('s_branch M_FIN')
    a('s_cmp_ge_u32 s30, 4')
    a('s_cbranch_scc1 M_G1L')
    a.label('M_G1C')
    p3.g1_compute(a)
    a('s_branch M_FIN')
    a.label('M_G1L')
    p3.g1_loader(a)
    if STOP <= 3: a('s_branch M_FIN')
    a('s_cmp_ge_u32 s2, 224')
    a('s_cbranch_scc1 M_FIN')
    p4.gemm2(a)
    a.label('M_FIN')
    if STAMPS:
        a('s_waitcnt vmcnt(0)')
        a('s_cmp_eq_u32 s30, 0')
        a('s_cbranch_scc0 M_FIN2')
        stamp_end(a, 0, 'w0', 0)
        a('s_endpgm')
        a.label('M_FIN2')
        a('s_cmp_eq_u32 s30, 4')
        a('s_cbranch_scc0 M_END')
        stamp_end(a, 1, 'w4', 256)
    a.label('M_END')
    a('s_endpgm')
    a.label('M_CODE_END')
    return kernel_text('mega_kernel', a, vgpr=256, sgpr=102)

HEADER = open('sequential_preLN__ssm_conv_s4__glu_gated_bilinear__prompt.s.ref').read().split('; Override launch')[0]
if __name__ == '__main__':
    path = sys.argv[1] if len(sys.argv) > 1 else 'mega.s'
    out = HEADER + '; @launch kernel=mega_kernel grid=(256,1,1) block=(512,1,1) lds=163840\n.amdgcn_target "amdgcn-amd-amdhsa--gfx950"\n' + gen()
    open(path, 'w').write(out)
    print('wrote', path, len(out))
```
